```python
import torch

def _softmax(x, axis=-1):
    return torch.softmax(x, dim=axis)

def _gelu(x):
    return torch.nn.functional.gelu(x, approximate='tanh')

def _silu(x):
    return torch.nn.functional.silu(x)

def _sigmoid(x):
    return torch.sigmoid(x)

def _layernorm(x, axis=-1, eps=1e-05):
    m = x.mean(dim=axis, keepdim=True)
    v = x.var(dim=axis, keepdim=True, unbiased=False)
    return (x - m) / torch.sqrt(v + eps)

def _scatter_add(tgt, idx, src, axis=0):
    return tgt.clone().index_add_(axis, idx, src)

def _segment_sum(src, seg, n):
    out = torch.zeros((n,) + src.shape[1:], dtype=src.dtype)
    return out.index_add_(0, seg, src)

def _pad(x, pw):
    flat = tuple((v for pair in reversed(pw) for v in pair))
    return torch.nn.functional.pad(x, flat)
kernel_name = 'recurrent_scan__ssm_conv_s4d__mixer_gmlp__prompt'

def setup_inputs():

    _w = lambda a: (lambda t: t.to(torch.bfloat16) if t.is_floating_point() else t)(torch.as_tensor(a))

    def _A_setup():
        Bsz, L, D, N = (1, 2048, 448, 256)
        return {'u': _w((lambda *s: torch.randn(*s, dtype=torch.bfloat16) * 0.05)(Bsz, L, D)), 'log_A_real': _w((lambda *s: torch.randn(*s, dtype=torch.bfloat16) * 6.4)(D, N) * 0.5), 'A_imag': _w((lambda *s: torch.randn(*s, dtype=torch.bfloat16) * 0.05)(D, N) * 3.14), 'C_real': _w((lambda *s: torch.randn(*s, dtype=torch.bfloat16) * 0.05)(D, N) / N ** 0.5), 'C_imag': _w((lambda *s: torch.randn(*s, dtype=torch.bfloat16) * 0.05)(D, N) / N ** 0.5), 'log_dt': _w((lambda *s: torch.randn(*s, dtype=torch.bfloat16) * 0.05)(D) * 0.5 - 4.0), 'D_skip': _w((lambda *s: torch.randn(*s, dtype=torch.bfloat16) * 0.05)(D))}
    _A_in = _A_setup()

    def _B_setup():
        B, S, D, F = (1, 2048, 448, 1792)
        Fh = F // 2
        return {'x': _w((lambda *s: torch.randn(*s, dtype=torch.bfloat16) * 0.05)(B, S, D)), 'w_in': _w((lambda *s: torch.randn(*s, dtype=torch.bfloat16) * 0.4)(D, 2 * Fh)), 'w_sp': _w(0.01 * (lambda *s: torch.randn(*s, dtype=torch.bfloat16) * 0.4)(S, S)), 'b_sp': _w(1.0 + 0.01 * (lambda *s: torch.randn(*s, dtype=torch.bfloat16) * 0.05)(S)), 'w_out': _w((lambda *s: torch.randn(*s, dtype=torch.bfloat16) * 0.05)(Fh, D))}
    _B_in = _B_setup()
    return {'A_u': _A_in['u'], 'A_log_A_real': _A_in['log_A_real'], 'A_A_imag': _A_in['A_imag'], 'A_C_real': _A_in['C_real'], 'A_C_imag': _A_in['C_imag'], 'A_log_dt': _A_in['log_dt'], 'A_D_skip': _A_in['D_skip'], 'B_x': _B_in['x'], 'B_w_in': _B_in['w_in'], 'B_w_sp': _B_in['w_sp'], 'B_b_sp': _B_in['b_sp'], 'B_w_out': _B_in['w_out']}

def reference(A_u, A_log_A_real, A_A_imag, A_C_real, A_C_imag, A_log_dt, A_D_skip, B_x, B_w_in, B_w_sp, B_b_sp, B_w_out):

    def _A_ref(u, log_A_real, A_imag, C_real, C_imag, log_dt, D_skip):
        L = u.shape[1]
        dt = torch.exp(log_dt)
        A = -torch.exp(log_A_real) + 1j * A_imag
        C = (C_real + 1j * C_imag) * dt[:, None]
        pos = (lambda x, dt: x.to(dt))(torch.arange(L), log_dt.dtype)
        P = torch.exp((A * dt[:, None])[:, :, None] * pos[None, None, :])
        K = 2.0 * torch.einsum('dn,dnl->dl', C, P).real
        L2 = 2 * L
        u_t = (lambda x, *d: x.permute(*d))(u, 0, 2, 1)
        Kf = (lambda x, *a, **k: torch.fft.rfft(x.float(), *a, **k))(K, L2)
        Uf = (lambda x, *a, **k: torch.fft.rfft(x.float(), *a, **k))(u_t, L2)
        y = (lambda x, *a, **k: torch.fft.irfft(x, *a, **k).to(torch.bfloat16))(Uf * Kf[None, :, :], L2)[:, :, :L]
        y = (lambda x, *d: x.permute(*d))(y, 0, 2, 1)
        return y + u * D_skip[None, None, :]

    def _B_ref(x, w_in, w_sp, b_sp, w_out):
        B, S, D = x.shape
        F = w_in.shape[-1]
        Fh = F // 2
        z = _gelu(torch.einsum('bsd,df->bsf', x, w_in))
        z1 = z[..., :Fh].clone()
        z2 = _layernorm(z[..., Fh:], axis=-1)
        g = torch.einsum('ts,bsf->btf', w_sp, z2) + b_sp[None, :, None]
        return torch.einsum('bsf,fd->bsd', z1 * g, w_out)
    x = A_u
    xn = _layernorm(x, axis=-1)
    s = _A_ref(xn, A_log_A_real, A_A_imag, A_C_real, A_C_imag, A_log_dt, A_D_skip)
    g = _silu(_B_ref(xn, B_w_in, B_w_sp, B_b_sp, B_w_out))
    return x + s * g
```

```python
import re

TRANS = ("v_exp_", "v_log_", "v_rcp_", "v_rsq_", "v_sqrt_", "v_sin_", "v_cos_")
REG_RE = re.compile(r"(?<![\w.])([vas])(?:(\d+)|\[(\d+):(\d+)\])(?![\w])")

def regs_of(tok):
    out = set()
    for m in REG_RE.finditer(tok):
        k = m.group(1)
        if m.group(2) is not None:
            out.add((k, int(m.group(2))))
        else:
            for i in range(int(m.group(3)), int(m.group(4)) + 1):
                out.add((k, i))
    t = tok.strip().lstrip('-')
    if t in ("vcc", "vcc_lo", "vcc_hi"): out.add(("s", "vcc"))
    if t in ("exec", "exec_lo", "exec_hi"): out.add(("s", "exec"))
    if t == "m0": out.add(("s", "m0"))
    return out

def split_ops(s):
    ops, depth, cur = [], 0, ""
    for ch in s:
        if ch in "[(": depth += 1
        if ch in "])": depth -= 1
        if ch == "," and depth == 0:
            ops.append(cur.strip()); cur = ""
        else:
            cur += ch
    if cur.strip(): ops.append(cur.strip())
    return ops

class Ins:
    __slots__ = ("text", "op", "ops", "mods", "kind", "wr", "rd", "srcA", "srcB", "srcC", "passes", "label", "target",
                 "trans", "dot", "dpp", "perml", "wide_store_data", "lds_dma", "ws", "sdwa")
    def __init__(self, text):
        self.text = text
        t = text.split(";")[0].strip()
        self.label = None; self.target = None
        self.wr = set(); self.rd = set(); self.srcA = set(); self.srcB = set(); self.srcC = set()
        self.passes = 0; self.trans = False; self.dot = False; self.dpp = False; self.perml = False
        self.wide_store_data = set(); self.lds_dma = False; self.ws = 1; self.sdwa = False
        if not t or t.startswith("."):
            self.kind = "dir"; self.op = ""; self.ws = 0; return
        if t.endswith(":"):
            self.kind = "label"; self.label = t[:-1]; self.op = ""; self.ws = 0; return
        parts = t.split(None, 1)
        self.op = op = parts[0]
        rest = parts[1] if len(parts) > 1 else ""
        ops = split_ops(rest)
        mods = ""
        if ops:
            last = ops[-1]
            m = re.match(r"^(-?\|?[\w\[\]:.()\-|]+\|?)(\s+.*)?$", last)
            if m and m.group(2):
                ops[-1] = m.group(1); mods = m.group(2)
        self.ops = ops; self.mods = mods
        R = [regs_of(o) for o in ops]
        if op.startswith("v_mfma"):
            self.kind = "mfma"
            self.wr = R[0]; self.srcA = R[1]; self.srcB = R[2]; self.srcC = R[3]
            self.rd = R[1] | R[2] | R[3]
            if "16x16x32" in op or "16x16x16" in op: self.passes = 4
            elif "32x32x16" in op or "32x32x8" in op: self.passes = 8
            else: raise ValueError("unknown mfma " + op)
        elif op.startswith("v_"):
            self.kind = "valu"
            self.trans = op.startswith(TRANS)
            self.dot = op.startswith("v_dot")
            self.dpp = bool(re.search(r"row_|quad_perm|wave_|_dpp", mods + op))
            self.sdwa = "sdwa" in op or ("op_sel" in mods and not op.startswith("v_pk_"))
            self.perml = op.startswith("v_permlane")
            if op == "v_nop":
                pass
            elif self.perml:
                self.wr = R[0] | R[1]; self.rd = R[0] | R[1]
            elif op.startswith(("v_add_co", "v_sub_co", "v_subrev_co", "v_addc_co", "v_subb_co", "v_div_scale", "v_mad_u64_u32")):
                self.wr = R[0] | R[1]
                for r in R[2:]: self.rd |= r
            else:
                self.wr = set(R[0])
                for r in R[1:]: self.rd |= r
                if op.startswith(("v_fmac", "v_dot2c", "v_pk_fmac", "v_writelane", "v_mac")) or self.dpp or "UNUSED_PRESERVE" in mods:
                    self.rd |= R[0]
                if op.startswith("v_cmpx"): self.wr |= {("s", "exec")}
                if op.startswith("v_cndmask") and len(ops) == 3: self.rd |= {("s", "vcc")}
                if op.startswith("v_div_fmas"): self.rd |= {("s", "vcc")}
        elif op.startswith(("buffer_", "global_", "flat_")):
            self.kind = "vmem"
            lds = bool(re.search(r"\blds\b", mods)) or "load_lds" in op
            self.lds_dma = lds
            if "store" in op or ("atomic" in op):
                for r in R: self.rd |= r
                if op.startswith("buffer_"): data = R[0]
                else: data = R[1]
                if "x3" in op or "x4" in op: self.wide_store_data = data
                if "atomic" in op and "sc0" in mods:
                    self.wr = set(R[0])
            elif op.startswith(("buffer_inv", "buffer_wbl2")):
                pass
            elif lds:
                for r in R: self.rd |= r
                self.rd |= {("s", "m0")}
            else:
                self.wr = set(R[0])
                for r in R[1:]: self.rd |= r
                if "d16" in op: self.rd |= R[0]
        elif op.startswith("ds_"):
            self.kind = "ds"
            if op.startswith(("ds_read", "ds_bpermute", "ds_permute", "ds_swizzle")) or "_rtn" in op:
                self.wr = set(R[0])
                for r in R[1:]: self.rd |= r
                if "d16" in op: self.rd |= R[0]
            else:
                for r in R: self.rd |= r
        elif op.startswith("s_"):
            self.kind = "salu"
            if op == "s_nop":
                self.ws = int(ops[0], 0) + 1
            elif op.startswith(("s_cbranch", "s_branch")):
                self.target = ops[0]
            elif op.startswith(("s_cmp", "s_waitcnt", "s_barrier", "s_endpgm", "s_setprio", "s_sleep", "s_bitcmp", "s_setreg")):
                for r in R: self.rd |= r
            else:
                self.wr = set(R[0]) if R else set()
                for r in R[1:]: self.rd |= r
                if "saveexec" in op: self.wr |= {("s", "exec")}
        else:
            raise ValueError("unknown instruction: " + text)

def vg(s): return {r for r in s if r[0] in "va"}
def sg(s): return {r for r in s if r[0] == "s"}

def need(p, c):
    n = 0
    if p.kind == "valu":
        pv = vg(p.wr); ps = sg(p.wr)
        if c.kind == "mfma":
            if pv & c.rd: n = max(n, 3 if p.dot else 2)
            if ("s", "exec") in ps: n = max(n, 4)
        if c.kind == "valu":
            if p.trans and not c.trans and pv & c.rd: n = max(n, 1)
            if p.sdwa and pv & (c.rd | c.wr): n = max(n, 1)
            if p.dot and pv & (c.rd | c.wr):
                if c.op == p.op:
                    ab = regs_of(c.ops[1]) | regs_of(c.ops[2])
                    if pv & ab: n = max(n, 3)
                else:
                    n = max(n, 3)
            if c.op.startswith(("v_readlane", "v_readfirstlane")) and pv & c.rd: n = max(n, 1)
            if (c.dpp or c.perml) and pv & c.rd: n = max(n, 2)
            if ps & c.rd:
                n = max(n, 4 if c.op.startswith(("v_readlane", "v_writelane", "v_div_fmas")) else 2)
            if ("s", "exec") in ps:
                if c.dpp: n = max(n, 5)
                if c.perml or c.op.startswith(("v_readlane", "v_readfirstlane", "v_writelane")): n = max(n, 4)
        if c.kind in ("vmem", "ds"):
            if ps & c.rd: n = max(n, 5)
            if p.dot and pv & (c.rd | c.wr): n = max(n, 3)
            if p.trans and pv & c.rd: n = max(n, 1)
        if c.kind == "salu":
            if ps & c.rd: n = max(n, 1)
            if c.op.startswith("s_cbranch_vcc") and ("s", "vcc") in ps: n = max(n, 5)
    elif p.kind == "mfma":
        big = {4: 8, 8: 12}[p.passes]
        if c.kind == "mfma":
            if p.wr & (c.srcA | c.srcB): n = max(n, big)
            if p.wr & c.srcC:
                if not (p.wr == c.srcC and p.passes == c.passes): n = max(n, p.passes + 2)
            elif p.wr & c.wr:
                n = max(n, p.passes + 2)
        elif c.kind == "valu":
            if p.wr & (c.rd | c.wr): n = max(n, big)
            if p.srcC & c.wr: n = max(n, {4: 3, 8: 7}[p.passes])
        elif c.kind in ("vmem", "ds"):
            if p.wr & (c.rd | c.wr): n = max(n, big)
    elif p.kind == "salu":
        if ("s", "m0") in p.wr and (c.lds_dma or "addtid" in c.op or c.op.startswith("s_movrel")): n = max(n, 1)
    elif p.kind in ("vmem",):
        if p.wide_store_data:
            if c.kind in ("valu", "mfma") and p.wide_store_data & c.wr: n = max(n, 2)
            elif p.wide_store_data & c.wr: n = max(n, 1)
    return n

MAXW = 13

class Prog:
    def __init__(self):
        self.ins = []
    def __call__(self, text):
        for line in text.split("\n"):
            if line.strip():
                self.ins.append(Ins(line.strip()))
    def label(self, name):
        self.ins.append(Ins(name + ":"))
    def fix_hazards(self):
        total = 0
        while True:
            ins = self.ins
            labels = {x.label: i for i, x in enumerate(ins) if x.kind == "label"}
            srcs = {}
            for i, x in enumerate(ins):
                if x.target is not None and x.target in labels:
                    srcs.setdefault(labels[x.target], []).append(i)
            inserts = {}
            for i, c in enumerate(ins):
                if c.kind in ("dir", "label"): continue
                worst = 0
                stack = [(i, 0)]
                seen = {}
                while stack:
                    j, d = stack.pop()
                    preds = []
                    if j > 0 and ins[j - 1].op not in ("s_branch", "s_endpgm"): preds.append(j - 1)
                    if j in srcs: preds += srcs[j]
                    for p in preds:
                        x = ins[p]
                        if x.kind not in ("dir", "label"):
                            nd = need(x, c)
                            if nd > d: worst = max(worst, nd - d)
                        d2 = d + x.ws
                        if d2 < MAXW and seen.get(p, 99) > d2:
                            seen[p] = d2
                            stack.append((p, d2))
                if worst: inserts[i] = worst
            if not inserts: break
            first = min(inserts)
            new = []
            last_ins = -100
            for i, x in enumerate(ins):
                if i in inserts and i - last_ins > MAXW:
                    new.append(Ins("s_nop %d" % (inserts[i] - 1)))
                    total += inserts[i]
                    last_ins = i
                new.append(x)
            self.ins = new
        return total
    def text(self):
        out = []
        for x in self.ins:
            if x.kind == "label": out.append(x.text)
            elif x.kind == "dir": out.append(x.text)
            else: out.append("    " + x.text)
        return "\n".join(out) + "\n"

class Cnt:
    def __init__(self, prog, name, maxv):
        self.p = prog; self.name = name; self.q = []; self.maxv = maxv
    def issue(self, tag=None):
        self.q.append(tag)
    def wait(self, tag):
        idx = [i for i, t in enumerate(self.q) if t == tag]
        if not idx: return
        n = len(self.q) - 1 - idx[-1]
        self.q = self.q[idx[-1] + 1:]
        if n <= self.maxv:
            self.p("s_waitcnt %s(%d)" % (self.name, n))
        else:
            self.p("s_waitcnt %s(%d)" % (self.name, self.maxv))
            self.q = self.q[len(self.q) - self.maxv:]
    def wait_all(self):
        self.p("s_waitcnt %s(0)" % self.name); self.q = []

def vr(a, n=1):
    return "v%d" % a if n == 1 else "v[%d:%d]" % (a, a + n - 1)
def ar(a, n=1):
    return "a%d" % a if n == 1 else "a[%d:%d]" % (a, a + n - 1)
def sr(a, n=1):
    return "s%d" % a if n == 1 else "s[%d:%d]" % (a, a + n - 1)

def kernel_header(name):
    return f".globl {name}\n.p2align 8\n.type {name},@function\n{name}:\n"

def kernel_desc(name, vgpr, sgpr=102, accum=None, agpr=0):
    if accum is None: accum = (vgpr + 3) // 4 * 4
    nfv = accum + agpr if agpr else vgpr
    return f""".p2align 6
.amdhsa_kernel {name}
  .amdhsa_next_free_vgpr {nfv}
  .amdhsa_next_free_sgpr {sgpr}
  .amdhsa_accum_offset {accum}
  .amdhsa_group_segment_fixed_size 0
  .amdhsa_kernarg_size 120
  .amdhsa_user_sgpr_count 2
  .amdhsa_user_sgpr_kernarg_segment_ptr 1
  .amdhsa_system_sgpr_workgroup_id_x 1
.end_amdhsa_kernel
"""
```

```python
import sys, struct
from asmdsl import *

ABL = [a[6:] for a in sys.argv if a.startswith("--abl=")]
NAME = "recurrent_scan__ssm_conv_s4d__mixer_gmlp__prompt"
Z1F = 0x000000
Z2F = 0x400000
STAT = 0x800000
XNT = 0x900000
ST = 0xB00000
HF = 0xD00000
WOT = 0x1100000
WS_SIZE = 0x1200000
STAMP = 0x2000000

def f2u(f):
    return "0x%08x" % struct.unpack("<I", struct.pack("<f", f))[0]

def srd(p, d, base, size):
    p(f"s_mov_b32 s{d}, s{base}")
    p(f"s_and_b32 s{d+1}, s{base+1}, 0xffff")
    p(f"s_mov_b32 s{d+2}, {size:#x}")
    p(f"s_mov_b32 s{d+3}, 0x20000")

def bf16_round(p, dst, src, tmp=None):
    p(f"v_cvt_pk_bf16_f32 v{dst}, v{src}, v{src}")
    p(f"v_and_b32 v{dst}, 0xffff0000, v{dst}")

def ln_finish(p, vsum, vsq, n, vm, vr_, t0, t1):
    p(f"v_mul_f32 v{t0}, {f2u(1.0/n)}, v{vsum}")
    p(f"v_mul_f32 v{t1}, {f2u(1.0/n)}, v{vsq}")
    p(f"v_fma_f32 v{t1}, -v{t0}, v{t0}, v{t1}")
    p(f"v_max_f32 v{t1}, 0, v{t1}")
    bf16_round(p, vm, t0)
    bf16_round(p, t1, t1)
    p(f"v_add_f32 v{t1}, {f2u(1e-5)}, v{t1}")
    bf16_round(p, t1, t1)
    p(f"v_sqrt_f32 v{t1}, v{t1}")
    bf16_round(p, t1, t1)
    p(f"v_rcp_f32 v{vr_}, v{t1}")

NSTAMP = {}
STAMP_GROUPS = {}
SREG = 66
def stamp(p, slot, stamps):
    if not stamps: return
    p(f"s_memrealtime s[{SREG + 2*slot}:{SREG + 2*slot + 1}]")

def stamp_out(p, stamps, nslots, kidx, wsreg, waves, wave_s=30):
    if not stamps: return
    sreg = SREG
    p(f"s_memrealtime s[{sreg + 2*nslots}:{sreg + 2*nslots + 1}]")
    p("s_waitcnt vmcnt(0) lgkmcnt(0)")
    p(f"s_memrealtime s[{sreg + 2*nslots + 2}:{sreg + 2*nslots + 3}]")
    p("s_waitcnt lgkmcnt(0)")
    p(f"s_mul_i32 s3, s2, {waves}")
    p(f"s_add_u32 s3, s3, s{wave_s}")
    p(f"s_lshl_b32 s3, s3, 6")
    p(f"s_add_u32 s3, s3, {STAMP + kidx * 0x100000:#x}")
    p("v_mov_b32 v1, s3")
    for i in range(nslots + 2):
        p(f"v_mov_b32 v{2+i}, s{sreg + 2*i}")
    p("s_mov_b64 exec, 1")
    for i in range(nslots + 2):
        p(f"global_store_dword v1, v{2+i}, s[{wsreg}:{wsreg+1}] offset:{4*i}")
    p("s_waitcnt vmcnt(0)")

NSTAMP["k1_kernel"] = 14
def gen_k1(stamps=False):
    p = Prog()
    vm = Cnt(p, "vmcnt", 63)
    SLOT = 32768; NS = 4
    LDS_CS = SLOT * NS; LDS_ST = LDS_CS + 512; LDS_XT = LDS_ST + 2048; LDS_S2 = LDS_XT + 8192; LDS_TOTAL = LDS_S2 + 1024
    vLane, vI, vG = 1, 2, 3
    vAoff, vBoff, vXoff = 4, 6, 7
    vOnes = 8
    vBase = 12
    vt = 28
    vXN = 48
    vXS = 52
    vAcc = 56
    vF = 96
    vCS = 152
    vK = 168
    vZ = 200
    vS = 216
    NV = 232
    p("s_cmp_ge_u32 s2, 256")
    p("s_cbranch_scc1 L_k1_end")
    stamp(p, 0, stamps)
    p("s_load_dwordx2 s[4:5], s[0:1], 0")
    p("s_load_dwordx2 s[6:7], s[0:1], 64")
    p("s_load_dwordx2 s[10:11], s[0:1], 112")
    p(f"v_lshrrev_b32 v{vt}, 6, v0")
    p(f"v_and_b32 v{vLane}, 63, v0")
    p(f"v_readfirstlane_b32 s30, v{vt}")
    p(f"v_and_b32 v{vI}, 15, v0")
    p(f"v_lshrrev_b32 v{vG}, 4, v{vLane}")
    p("s_and_b32 s31, s2, 7")
    p("s_lshr_b32 s32, s2, 3")
    p("s_lshr_b32 s28, s31, 1")
    p("s_lshl_b32 s28, s28, 2")
    p("s_lshr_b32 s33, s32, 3")
    p("s_add_u32 s28, s28, s33")
    p("s_and_b32 s29, s31, 1")
    p("s_lshl_b32 s29, s29, 3")
    p("s_and_b32 s33, s32, 7")
    p("s_add_u32 s29, s29, s33")
    p("s_cmp_ge_u32 s29, 8")
    p("s_cselect_b64 s[38:39], -1, 0")
    p("s_cselect_b32 s34, 16, 8")
    p(f"v_lshrrev_b32 v{vt}, 3, v{vLane}")
    p(f"v_and_b32 v{vt+1}, 7, v{vLane}")
    p(f"v_xor_b32 v{vt+1}, v{vt+1}, v{vt}")
    p("s_lshl_b32 s35, s30, 4")
    p("s_lshl_b32 s36, s28, 7")
    p("s_add_u32 s35, s35, s36")
    p("s_lshr_b32 s37, s30, 1")
    p("s_lshl_b32 s37, s37, 5")
    p("s_add_u32 s36, s36, s37")
    p("s_and_b32 s37, s30, 1")
    p("s_lshl_b32 s37, s37, 2")
    p("s_add_u32 s36, s36, s37")
    p(f"v_add_u32 v{vt+2}, s35, v{vt}")
    p(f"v_lshrrev_b32 v{vt+3}, 2, v{vt}")
    p(f"v_lshlrev_b32 v{vt+3}, 3, v{vt+3}")
    p(f"v_and_b32 v{vt+4}, 3, v{vt}")
    p(f"v_add3_u32 v{vt+3}, v{vt+3}, v{vt+4}, s36")
    p(f"v_cndmask_b32 v{vt+2}, v{vt+2}, v{vt+3}, s[38:39]")
    p(f"v_mul_u32_u24 v{vAoff}, 896, v{vt+2}")
    p(f"v_lshl_add_u32 v{vAoff}, v{vt+1}, 4, v{vAoff}")
    p("s_mul_i32 s35, s34, 896")
    p(f"v_add_u32 v{vAoff+1}, s35, v{vAoff}")
    p("s_lshr_b32 s35, s30, 1")
    p("s_and_b32 s35, s35, 1")
    p("s_lshl_b32 s35, s35, 3")
    p(f"v_lshl_add_u32 v{vt}, v{vG}, 1, s35")
    p(f"v_xor_b32 v{vt}, v{vt}, v{vI}")
    p("s_lshl_b32 s35, s30, 2")
    p(f"v_add_u32 v{vt+1}, s35, v{vG}")
    p(f"v_mul_u32_u24 v{vBoff}, 3584, v{vt+1}")
    p(f"v_lshl_add_u32 v{vBoff}, v{vt}, 4, v{vBoff}")
    p("s_mul_i32 s35, s29, 224")
    p("s_and_b32 s35, s35, 0xffffffc0")
    p(f"v_add_u32 v{vBoff}, s35, v{vBoff}")
    p("s_lshl_b32 s40, s30, 11")
    p("s_lshl_b32 s41, s30, 10")
    p("s_add_u32 s41, s41, 16384")
    p("s_waitcnt lgkmcnt(0)")
    srd(p, 12, 4, 1835008)
    srd(p, 16, 6, 1605632)
    def issue_stage(c):
        sl = (c % NS) * SLOT
        p(f"s_add_u32 m0, s40, {sl}")
        p(f"s_mov_b32 s54, {128*c}")
        p(f"buffer_load_dwordx4 v{vAoff}, s[12:15], s54 offen lds"); vm.issue(c)
        p(f"s_add_u32 m0, s41, {sl}")
        p(f"s_mov_b32 s53, {2*c*114688}")
        p(f"buffer_load_dwordx4 v{vBoff}, s[16:19], s53 offen lds"); vm.issue(c)
        p(f"s_add_u32 m0, s40, {sl + 1024}")
        p(f"s_mov_b32 s53, {(2*c+1)*114688}")
        p(f"buffer_load_dwordx4 v{vAoff+1}, s[12:15], s54 offen lds"); vm.issue(c)
        p(f"s_add_u32 m0, s41, {sl + 8192}")
        p(f"buffer_load_dwordx4 v{vBoff}, s[16:19], s53 offen lds"); vm.issue(c)
    for c in range(NS): issue_stage(c)
    p(f"v_lshrrev_b32 v{vt}, 2, v0")
    p("s_lshl_b32 s35, s28, 7")
    p(f"v_add_u32 v{vt}, s35, v{vt}")
    p(f"v_mul_u32_u24 v{vXoff}, 896, v{vt}")
    p(f"v_and_b32 v{vt}, 3, v0")
    p(f"v_lshl_add_u32 v{vXoff}, v{vt}, 4, v{vXoff}")
    p("s_min_u32 s35, s29, 13")
    p("s_lshl_b32 s35, s35, 6")
    p(f"buffer_load_dwordx4 {vr(vXN, 4)}, v{vXoff}, s[12:15], s35 offen"); vm.issue("XN")
    srd(p, 24, 10, WS_SIZE)
    p("s_and_b32 s55, s30, 3")
    p("s_lshl_b32 s35, s55, 12")
    p(f"v_and_b32 v{vt}, 7, v{vI}")
    p(f"v_xor_b32 v{vt}, v{vt}, v{vG}")
    p(f"v_lshlrev_b32 v{vt}, 4, v{vt}")
    p(f"v_lshl_add_u32 v{vt}, v{vI}, 7, v{vt}")
    p(f"v_add_u32 v{vBase}, s35, v{vt}")
    p(f"v_xor_b32 v{vBase+1}, 64, v{vBase}")
    p(f"v_lshrrev_b32 v{vt}, 2, v{vI}")
    p(f"v_lshl_add_u32 v{vt+1}, v{vG}, 3, v{vt}")
    p(f"v_lshlrev_b32 v{vt+1}, 8, v{vt+1}")
    p(f"v_and_b32 v{vt+2}, 3, v{vLane}")
    p(f"v_lshl_add_u32 v{vt+1}, v{vt+2}, 3, v{vt+1}")
    p(f"v_add_u32 v{vt+1}, 16384, v{vt+1}")
    p(f"v_and_b32 v{vt+2}, 1, v{vG}")
    p(f"v_lshl_add_u32 v{vt}, v{vt+2}, 2, v{vt}")
    p("s_and_b32 s56, s29, 1")
    p("s_lshr_b32 s57, s30, 2")
    p("s_lshl_b32 s35, s57, 2")
    p("s_add_u32 s35, s35, s56")
    p("s_lshl_b32 s36, s55, 1")
    p("s_add_u32 s36, s36, s56")
    p("s_add_u32 s37, s35, 3")
    p("s_cmp_eq_u32 s57, 1")
    p("s_cselect_b32 s37, s36, s37")
    p("s_add_u32 s36, s36, 1")
    p("s_min_u32 s36, s36, 7")
    for n in range(5):
        if n < 3:
            p(f"v_xor_b32 v{vt+2}, s35, v{vt}")
            p("s_add_u32 s35, s35, 1")
        else:
            p(f"v_xor_b32 v{vt+2}, s{37 if n == 3 else 36}, v{vt}")
        p(f"v_lshl_add_u32 v{vBase+2+n}, v{vt+2}, 5, v{vt+1}")
    for j in range(7):
        p(f"v_add_u32 v{vBase+7+j}, {2*SLOT}, v{vBase+j}")
    for j in range(4):
        p(f"v_mov_b32 v{vOnes+j}, 0x3f803f80")
    for j in range(40):
        p(f"v_mov_b32 v{vAcc+j}, 0")
    stamp(p, 1, stamps)

    def main(z2, nh):
        vmq = list(vm.q)
        tiles = [0, 1, 2, 3] if nh == 0 else [4, 5, 6]
        nfr = 4 if nh == 0 else 5
        def reads(k):
            c, hh = k >> 1, k & 1
            sl = c % NS
            bs = vBase + 7 * (sl >> 1); so = (sl & 1) * SLOT
            F = vF + 28 * (k & 1)
            out = []
            for a in range(2):
                out.append(f"ds_read_b128 {vr(F + 4*a, 4)}, v{bs + hh} offset:{so + 2048*a}")
            for n in range(nfr):
                off = so + hh * 8192
                out.append(f"ds_read_b64_tr_b16 {vr(F + 8 + 4*n, 2)}, v{bs+2+n} offset:{off}")
                out.append(f"ds_read_b64_tr_b16 {vr(F + 10 + 4*n, 2)}, v{bs+2+n} offset:{off + 1024}")
            return out
        def mfmas(k):
            F = vF + 28 * (k & 1)
            out = []
            X = vr(F + 4 * nh, 4)
            out.append(f"v_mfma_f32_16x16x32_bf16 {vr(vAcc+32, 4)}, {vr(vOnes, 4)}, {X}, {vr(vAcc+32, 4)}")
            out.append(f"v_mfma_f32_16x16x32_bf16 {vr(vAcc+36, 4)}, {X}, {X}, {vr(vAcc+36, 4)}")
            for n, f in enumerate(tiles):
                for a in range(2):
                    acc = vr(vAcc + 4 * (2 * n + a), 4); A = vr(F + 4*a, 4); B = vr(F + 8 + 4*n, 4)
                    if z2: out.append(f"v_mfma_f32_16x16x32_bf16 {acc}, {A}, {B}, {acc}")
                    else: out.append(f"v_mfma_f32_16x16x32_bf16 {acc}, {B}, {A}, {acc}")
            if nh == 1:
                for n in range(2):
                    acc = vr(vAcc + 4 * (6 + n), 4)
                    out.append(f"v_mfma_f32_16x16x32_bf16 {acc}, {vr(vOnes, 4)}, {vr(F + 20 + 4*n, 4)}, {acc}")
            return out
        vm.wait(0)
        p("s_barrier")
        stamp(p, 2, stamps)
        for l in reads(0): p(l)
        for k in range(14):
            p("s_waitcnt lgkmcnt(0)")
            M = mfmas(k)
            R = reads(k + 1) if k < 13 else []
            if "nomfma" in ABL: M = [""] * 10
            pre = 0
            if k < 13 and (k + 1) % 2 == 0:
                pre = 3
                for n in range(pre): p(M[n])
                c = (k + 1) // 2
                vm.wait(c)
                p("s_barrier")
                stamp(p, 2 + c, stamps)
                if c + NS - 1 <= 6 and c >= 1:
                    issue_stage(c + NS - 1)
            for n in range(pre, 10):
                for l in R[:2]: p(l)
                R = R[2:]
                p(M[n])
            assert not R
        stamp(p, 9, stamps)
        p(f"v_and_b32 v{vt}, 3, v{vI}")
        p(f"v_cmp_eq_u32 vcc, 1, v{vt}")
        p(f"v_cmp_eq_u32 s[44:45], 2, v{vt}")
        p(f"v_cmp_eq_u32 s[46:47], 3, v{vt}")
        p(f"v_cndmask_b32 v{vt+1}, v{vAcc+36}, v{vAcc+37}, vcc")
        p(f"v_cndmask_b32 v{vt+1}, v{vt+1}, v{vAcc+38}, s[44:45]")
        p(f"v_cndmask_b32 v{vt+1}, v{vt+1}, v{vAcc+39}, s[46:47]")
        c0 = -2.0 * 0.7978845608028654 * 1.4426950408889634
        c1 = c0 * 0.044715
        ln_finish(p, vAcc + 32, vt + 1, 448, vt + 4, vt + 8, vt + 2, vt + 7)
        p(f"v_xor_b32 v{vt+4}, 0x80000000, v{vt+4}")
        p(f"v_mul_f32 v{vt+5}, {f2u(c0)}, v{vt+8}")
        p(f"v_mul_f32 v{vt+6}, v{vt+8}, v{vt+8}")
        p(f"v_mul_f32 v{vt+6}, v{vt+6}, v{vt+8}")
        p(f"v_mul_f32 v{vt+6}, {f2u(c1)}, v{vt+6}")
        p("s_lshl_b32 s35, s55, 7")
        if z2:
            p(f"s_add_u32 s35, s35, {LDS_ST + 16*nh}")
            p(f"v_lshrrev_b32 v{vt+1}, 2, v{vI}")
            p(f"v_lshlrev_b32 v{vt+1}, 5, v{vt+1}")
            p(f"v_lshlrev_b32 v{vt}, 2, v{vt}")
            p(f"v_add3_u32 v{vt}, v{vt}, v{vt+1}, s35")
        else:
            p(f"s_add_u32 s35, s35, {LDS_ST + 64*nh}")
            p(f"v_lshl_add_u32 v{vt}, v{vI}, 2, s35")
        p("s_mov_b32 exec_lo, 0x00f0000f")
        p("s_mov_b32 exec_hi, 0xf0000f00")
        p(f"ds_write2st64_b32 v{vt}, v{vt+4}, v{vt+5} offset0:0 offset1:2")
        p(f"ds_write2st64_b32 v{vt}, v{vt+6}, v{vt+7} offset0:4 offset1:6")
        p("s_mov_b64 exec, -1")
        if nh == 1:
            p("s_lshl_b32 s35, s55, 7")
            p(f"s_add_u32 s35, s35, {LDS_CS}")
            p(f"v_lshl_add_u32 v{vt+2}, v{vI}, 2, s35")
            p(f"ds_write2_b32 v{vt+2}, v{vAcc+24}, v{vAcc+28} offset0:0 offset1:16")
        p("s_waitcnt lgkmcnt(0)")
        p("s_barrier")
        p("s_lshl_b32 s35, s55, 7")
        p(f"s_add_u32 s35, s35, {LDS_ST}")
        if z2:
            p(f"v_lshl_add_u32 v{vt+3}, v{vG}, 5, s35")
            for q in range(4):
                for a in range(2):
                    p(f"ds_read_b128 {vr(vK+8*q+4*a, 4)}, v{vt+3} offset:{512*q + 16*a}")
            p(f"v_lshlrev_b32 v{vt}, 2, v{vI}")
            p(f"v_add_u32 v{vt}, {LDS_CS}, v{vt}")
            for n, f in enumerate(tiles):
                p(f"ds_read_b32 v{vCS+2*n}, v{vt} offset:{64*f}")
        else:
            p(f"v_lshl_add_u32 v{vt+3}, v{vI}, 2, s35")
            for q in range(4):
                p(f"ds_read2_b32 {vr(vK+2*q, 2)}, v{vt+3} offset0:{128*q % 256} offset1:{(128*q+16) % 256}" if q < 2 else
                  f"ds_read2_b32 {vr(vK+2*q, 2)}, v{vt+2} offset0:{128*(q-2)} offset1:{128*(q-2)+16}")
                if q == 0: p(f"v_add_u32 v{vt+2}, 1024, v{vt+3}")
            p(f"v_lshlrev_b32 v{vt}, 4, v{vG}")
            p(f"v_add_u32 v{vt}, {LDS_CS}, v{vt}")
            for n, f in enumerate(tiles):
                p(f"ds_read_b128 {vr(vCS+4*n, 4)}, v{vt} offset:{64*f}")
        p(f"v_and_b32 v{vt+1}, 0x1fc, v0")
        p(f"v_add_u32 v{vt+1}, {LDS_ST}, v{vt+1}")
        p(f"ds_read2st64_b32 {vr(vXS, 2)}, v{vt+1} offset0:0 offset1:6")
        if z2:
            for j in range(16): p(f"v_mov_b32 v{vS+j}, 0")
            p("s_sub_u32 s36, s29, 8")
            p("s_lshl_b32 s37, s36, 6")
            p("s_lshl_b32 s52, s28, 2")
            p("s_add_u32 s37, s37, s52")
            p("s_add_u32 s37, s37, s55")
            p("s_mul_i32 s37, s37, 7168")
            p(f"s_add_u32 s37, s37, {Z2F + 4096*nh:#x}")
        else:
            p("s_lshl_b32 s36, s28, 3")
            p("s_lshl_b32 s37, s55, 1")
            p("s_add_u32 s36, s36, s37")
            p("s_lshl_b32 s36, s36, 3")
            p("s_add_u32 s36, s36, s29")
            p("s_mul_i32 s36, s36, 3584")
            p(f"s_add_u32 s36, s36, {Z1F:#x}")
            p(f"s_add_u32 s37, s36, {8*3584}")
            p(f"v_lshlrev_b32 v{vt+17}, 3, v{vLane}")
        p(f"v_lshlrev_b32 v{vt+16}, 4, v{vLane}")
        p("s_waitcnt lgkmcnt(0)")
        stamp(p, 10, stamps)
        def kop(q, a, h):
            if z2: return vr(vK + 8*q + 4*a + 2*h, 2), 0, 1
            return vr(vK + 2*q, 2), a, a
        def csop(n, h):
            if z2: return vr(vCS + 2*n, 2), 0, 0
            return vr(vCS + 4*n + 2*h, 2), 0, 1
        def pk(op, d, srcs):
            names = ", ".join(x[0] for x in srcs)
            sel = ",".join(str(x[1]) for x in srcs); selh = ",".join(str(x[2]) for x in srcs)
            p(f"{op} {d}, {names} op_sel:[{sel}] op_sel_hi:[{selh}]")
        for n, f in enumerate(tiles):
            PH = [(a, h) for a in range(2) for h in range(2)]
            A = {(a, h): vAcc + 4*(2*n + a) + 2*h for a, h in PH}
            T = {(a, h): vt + 4*a + 2*h for a, h in PH}
            R2 = lambda r: (vr(r, 2), 0, 1)
            for a, h in PH: pk("v_pk_fma_f32", vr(A[a, h], 2), [kop(0, a, h), csop(n, h), R2(A[a, h])])
            for a, h in PH: pk("v_pk_mul_f32", vr(T[a, h], 2), [R2(A[a, h]), R2(A[a, h])])
            for a, h in PH: pk("v_pk_fma_f32", vr(T[a, h], 2), [R2(T[a, h]), kop(2, a, h), kop(1, a, h)])
            for a, h in PH: pk("v_pk_mul_f32", vr(T[a, h], 2), [R2(T[a, h]), R2(A[a, h])])
            for j in range(8): p(f"v_exp_f32 v{vt+j}, v{vt+j}")
            for a, h in PH: pk("v_pk_fma_f32", vr(T[a, h], 2), [R2(T[a, h]), kop(3, a, h), kop(3, a, h)])
            for j in range(8): p(f"v_rcp_f32 v{vt+j}, v{vt+j}")
            for a, h in PH: pk("v_pk_mul_f32", vr(A[a, h], 2), [R2(A[a, h]), R2(T[a, h])])
            for a, h in PH:
                zr = vZ + 4*n + 2*a + h if z2 else vZ + 8*a + 2*n + h
                p(f"v_cvt_pk_bf16_f32 v{zr}, v{A[a, h]}, v{A[a, h]+1}")
            if z2:
                p(f"buffer_store_dwordx4 {vr(vZ+4*n, 4)}, v{vt+16}, s[24:27], s37 offen offset:{1024*n}")
                for a, h in PH: pk("v_pk_add_f32", vr(vS + 4*a + 2*h, 2), [R2(vS + 4*a + 2*h), R2(A[a, h])])
                for a, h in PH: pk("v_pk_fma_f32", vr(vS + 8 + 4*a + 2*h, 2), [R2(A[a, h]), R2(A[a, h]), R2(vS + 8 + 4*a + 2*h)])
            elif n & 1:
                for a in range(2):
                    p(f"buffer_store_dwordx4 {vr(vZ+8*a+2*(n-1), 4)}, v{vt+16}, s[24:27], s{36+a} offen offset:{1024*(f>>1)}")
            elif f == 6:
                for a in range(2):
                    p(f"buffer_store_dwordx2 {vr(vZ+8*a+2*n, 2)}, v{vt+17}, s[24:27], s{36+a} offen offset:3072")
        stamp(p, 11, stamps)
        if z2:
            for sh in (8, 4, 2, 1):
                for j in range(16):
                    p(f"v_add_f32_dpp v{vS+j}, v{vS+j}, v{vS+j} row_ror:{sh} row_mask:0xf bank_mask:0xf")
            p("s_lshl_b32 s37, s55, 8")
            p(f"s_add_u32 s37, s37, {LDS_S2}")
            p(f"v_lshl_add_u32 v{vt+1}, v{vG}, 6, s37")
            if nh == 1:
                p("s_mov_b32 exec_lo, 0x00010001")
                p("s_mov_b32 exec_hi, 0x00010001")
                for q in range(4):
                    p(f"ds_write_b128 v{vt+1}, {vr(vS+4*q, 4)} offset:{16*q}")
                p("s_mov_b64 exec, -1")
                p("s_waitcnt lgkmcnt(0)")
                p("s_barrier")
            else:
                p("s_lshl_b32 s36, s36, 14")
                p("s_lshl_b32 s37, s28, 9")
                p("s_add_u32 s36, s36, s37")
                p("s_lshl_b32 s37, s55, 7")
                p("s_add_u32 s36, s36, s37")
                p(f"s_add_u32 s36, s36, {STAT:#x}")
                p("s_add_u32 s37, s36, 8192")
                p(f"v_lshlrev_b32 v{vt}, 5, v{vG}")
                p("s_barrier")
                for q in range(4):
                    p(f"ds_read_b128 {vr(vCS+4*q, 4)}, v{vt+1} offset:{16*q}")
                p("s_waitcnt lgkmcnt(0)")
                for j in range(8):
                    p(f"v_pk_add_f32 {vr(vS+2*j, 2)}, {vr(vS+2*j, 2)}, {vr(vCS+2*j, 2)}")
                p("s_mov_b32 exec_lo, 0x00010001")
                p("s_mov_b32 exec_hi, 0x00010001")
                for q in range(4):
                    p(f"buffer_store_dwordx4 {vr(vS+4*q, 4)}, v{vt}, s[24:27], s{36 + (q >> 1)} offen offset:{16*(q & 1)}")
                p("s_mov_b64 exec, -1")
        lbl = "L_k1_noxn%d%d" % (z2, nh)
        p("s_cmp_ge_u32 s29, 14")
        p(f"s_cbranch_scc1 {lbl}")
        p(f"v_rcp_f32 v{vXS+1}, v{vXS+1}")
        p(f"v_and_b32 v{vt+2}, 3, v{vLane}")
        p(f"v_lshlrev_b32 v{vt+2}, 8, v{vt+2}")
        p(f"v_lshrrev_b32 v{vt+3}, 2, v{vLane}")
        p(f"v_lshl_add_u32 v{vt+2}, v{vt+3}, 1, v{vt+2}")
        p("s_lshl_b32 s36, s30, 10")
        p(f"s_add_u32 s36, s36, {LDS_XT}")
        p(f"v_add_u32 v{vt+2}, s36, v{vt+2}")
        for j in range(4):
            lo, hi = vt + 4 + 2*j, vt + 5 + 2*j
            p(f"v_lshlrev_b32 v{lo}, 16, v{vXN+j}")
            p(f"v_and_b32 v{hi}, 0xffff0000, v{vXN+j}")
        for j in range(4):
            lo = vt + 4 + 2*j
            p(f"v_pk_add_f32 {vr(lo, 2)}, {vr(lo, 2)}, {vr(vXS, 2)} op_sel:[0,0] op_sel_hi:[1,0]")
        for j in range(4):
            lo, hi = vt + 4 + 2*j, vt + 5 + 2*j
            p(f"v_cvt_pk_bf16_f32 v{hi}, v{lo}, v{hi}")
        for j in range(4):
            lo, hi = vt + 4 + 2*j, vt + 5 + 2*j
            p(f"v_lshlrev_b32 v{lo}, 16, v{hi}")
            p(f"v_and_b32 v{hi}, 0xffff0000, v{hi}")
        for j in range(4):
            lo = vt + 4 + 2*j
            p(f"v_pk_mul_f32 {vr(lo, 2)}, {vr(lo, 2)}, {vr(vXS, 2)} op_sel:[0,1] op_sel_hi:[1,1]")
        for j in range(4):
            lo, hi = vt + 4 + 2*j, vt + 5 + 2*j
            p(f"v_cvt_pk_bf16_f32 v{hi}, v{lo}, v{hi}")
        for j in range(4):
            lo, hi = vt + 4 + 2*j, vt + 5 + 2*j
            p(f"v_lshlrev_b32 v{lo}, 16, v{hi}")
            p(f"v_and_b32 v{hi}, 0xffff0000, v{hi}")
        for j in range(4):
            lo, hi = vt + 4 + 2*j, vt + 5 + 2*j
            p(f"v_cvt_pk_f16_f32 v{vXN+j}, v{lo}, v{hi}")
        for j in range(4):
            p(f"ds_write_b16 v{vt+2}, v{vXN+j} offset:{64*j}")
            p(f"ds_write_b16_d16_hi v{vt+2}, v{vXN+j} offset:{64*j+32}")
        p(f"v_lshl_add_u32 v{vt+2}, v{vLane}, 4, s36")
        p("s_waitcnt lgkmcnt(0)")
        p(f"ds_read_b128 {vr(vXN, 4)}, v{vt+2}")
        p(f"v_lshrrev_b32 v{vt+1}, 1, v{vLane}")
        p(f"v_lshlrev_b32 v{vt+1}, 12, v{vt+1}")
        p(f"v_and_b32 v{vt+2}, 1, v{vLane}")
        p(f"v_lshl_add_u32 v{vt+1}, v{vt+2}, 4, v{vt+1}")
        p("s_lshl_b32 s36, s29, 17")
        p("s_lshl_b32 s37, s28, 8")
        p("s_add_u32 s36, s36, s37")
        p("s_lshl_b32 s37, s30, 5")
        p("s_add_u32 s36, s36, s37")
        p(f"s_add_u32 s36, s36, {XNT:#x}")
        p("s_waitcnt lgkmcnt(0)")
        p(f"buffer_store_dwordx4 {vr(vXN, 4)}, v{vt+1}, s[24:27], s36 offen")
        p.label(lbl)
        stamp_out(p, stamps, 12, 0, 10, 8)
        p("s_endpgm")
        vm.q = vmq

    p("s_cmp_ge_u32 s29, 8")
    p("s_cbranch_scc1 L_k1_z2")
    p("s_cmp_ge_u32 s30, 4")
    p("s_cbranch_scc1 L_k1_z1b")
    main(False, 0)
    p.label("L_k1_z1b")
    main(False, 1)
    p.label("L_k1_z2")
    p("s_cmp_ge_u32 s30, 4")
    p("s_cbranch_scc1 L_k1_z2b")
    main(True, 0)
    p.label("L_k1_z2b")
    main(True, 1)
    p.label("L_k1_end")
    p("s_endpgm")
    n = p.fix_hazards()
    return p, NV, LDS_TOTAL

NSTAMP["k2_kernel"] = 8
STAMP_GROUPS["k2_kernel"] = [(0, 1024), (1024, 2048), (2048, 2816)]
def gen_k2(stamps=False):
    p = Prog()
    vm = Cnt(p, "vmcnt", 63)
    LDS_TOTAL = 81920
    p("s_cmp_ge_u32 s2, 704")
    p("s_cbranch_scc1 L_k2_end")
    stamp(p, 0, stamps)
    p("s_cmp_ge_u32 s2, 256")
    p("s_cbranch_scc1 L_k2_side")
    LDS_TAB = 65536
    vLane16, vWoff, vWr0, vWr1, vRa, vMa = 1, 2, 3, 4, 5, 6
    vt = 7
    vR = 12
    vMu = 20
    vWf = 28
    NZ = 17
    vZr = 60
    vAcc = 128
    vCor = 240
    p("s_load_dwordx4 s[4:7], s[0:1], 72")
    p("s_load_dwordx2 s[10:11], s[0:1], 112")
    p(f"v_lshrrev_b32 v{vt}, 6, v0")
    p(f"v_and_b32 v0, 63, v0")
    p(f"v_readfirstlane_b32 s30, v{vt}")
    p(f"v_lshlrev_b32 v{vLane16}, 4, v0")
    p("s_and_b32 s31, s2, 7")
    p("s_lshr_b32 s32, s2, 3")
    p("s_lshr_b32 s28, s31, 1")
    p("s_lshl_b32 s28, s28, 3")
    p("s_lshr_b32 s33, s32, 2")
    p("s_add_u32 s28, s28, s33")
    p("s_and_b32 s29, s31, 1")
    p("s_lshl_b32 s29, s29, 2")
    p("s_and_b32 s33, s32, 3")
    p("s_add_u32 s29, s29, s33")
    p("s_and_b32 s34, s32, 7")
    p(f"v_lshrrev_b32 v{vt}, 3, v0")
    p(f"v_and_b32 v{vt+1}, 7, v0")
    p(f"v_xor_b32 v{vt+1}, v{vt+1}, v{vt}")
    p(f"v_lshlrev_b32 v{vWoff}, 12, v{vt}")
    p(f"v_lshl_add_u32 v{vWoff}, v{vt+1}, 4, v{vWoff}")
    p("s_lshl_b32 s35, s28, 18")
    p("s_lshl_b32 s40, s30, 10")
    p("s_add_u32 s35, s35, s40")
    for t in range(4):
        p(f"s_xor_b32 s{36+t}, s30, {t}")
        p(f"s_lshl_b32 s{36+t}, s{36+t}, 16")
        p(f"s_add_u32 s{36+t}, s{36+t}, s35")
    p("s_lshl_b32 s40, s30, 14")
    p("s_lshl_b32 s41, s29, 6")
    p("s_lshl_b32 s42, s30, 4")
    p("s_add_u32 s41, s41, s42")
    p("s_mul_i32 s41, s41, 7168")
    p(f"s_add_u32 s41, s41, {Z2F:#x}")
    p("s_lshl_b32 s42, s30, 11")
    p(f"s_add_u32 s42, s42, {STAT:#x}")
    p("s_waitcnt lgkmcnt(0)")
    srd(p, 24, 10, WS_SIZE)
    srd(p, 12, 4, 8388608)
    srd(p, 16, 6, 4096)
    for nt in range(8):
        for pl in range(2):
            for hf in range(2):
                r = vAcc + ((nt * 2 + pl) * 2 + hf) * 4
                p(f"buffer_load_dwordx4 {vr(r, 4)}, v{vLane16}, s[24:27], s42 offen offset:{1024*hf}"); vm.issue(("S", nt))
            p("s_add_u32 s42, s42, 8192")
    def cc_to(sreg, c):
        p(f"s_add_u32 s{sreg}, s34, {c}")
        p(f"s_and_b32 s{sreg}, s{sreg}, 7")
    def issue_w(c):
        out = []
        out.append(f"s_add_u32 s43, s34, {c}\ns_and_b32 s43, s43, 7\ns_lshl_b32 s43, s43, 7")
        for n in range(8):
            pre = out.pop() + "\n" if n == 0 else ""
            t = n >> 1
            if n & 1 == 0:
                a = f"s_add_u32 s44, s{36+t}, s43"
            else:
                a = "s_add_u32 s44, s44, 32768"
            out.append(pre + f"s_add_u32 m0, s40, {(c & 1) * 8192 + 1024 * n}\n{a}\n"
                       f"buffer_load_dwordx4 v{vWoff}, s[12:15], s44 offen lds")
        return out
    def zload(q):
        k, f = divmod(q, 7)
        pre = ""
        if f == 0:
            if k & 1 == 0:
                pre = f"s_add_u32 s45, s34, {k >> 1}\ns_and_b32 s45, s45, 7\ns_mul_i32 s45, s45, 14336\ns_add_u32 s45, s45, s41\n"
            else:
                pre = "s_add_u32 s45, s45, 3072\n"
        if f == 4: pre = "s_add_u32 s45, s45, 4096\n"
        return pre + f"buffer_load_dwordx4 {vr(vZr + 4 * (q % NZ), 4)}, v{vLane16}, s[24:27], s45 offen offset:{1024 * (f & 3)}"
    for l in issue_w(0): p(l); vm.issue(("W", 0))
    for q in range(7): p(zload(q)); vm.issue(("Z", q))
    for l in issue_w(1): p(l); vm.issue(("W", 1))
    for q in range(7, NZ): p(zload(q)); vm.issue(("Z", q))
    p(f"v_and_b32 v{vt}, 15, v0")
    p(f"v_lshrrev_b32 v{vt+1}, 4, v0")
    p(f"v_and_b32 v{vt+2}, 7, v0")
    p(f"v_xor_b32 v{vt+2}, v{vt+2}, v{vt+1}")
    p(f"v_lshlrev_b32 v{vt+2}, 4, v{vt+2}")
    p(f"v_lshl_add_u32 v{vt+2}, v{vt}, 7, v{vt+2}")
    p(f"v_add_u32 v{vWr0}, s40, v{vt+2}")
    p(f"v_xor_b32 v{vWr1}, 64, v{vWr0}")
    p("s_lshl_b32 s46, s30, 12")
    p(f"s_add_u32 s46, s46, {LDS_TAB}")
    p(f"v_lshl_add_u32 v{vRa}, v{vt+1}, 5, s46")
    p(f"v_and_b32 v{vt+2}, 1, v0")
    p(f"v_lshlrev_b32 v{vt+2}, 10, v{vt+2}")
    p(f"v_lshl_add_u32 v{vt+2}, v{vt+1}, 4, v{vt+2}")
    p(f"v_add_u32 v{vMa}, s46, v{vt+2}")
    for nt in range(1, 8):
        vm.wait(("S", nt))
        for j in range(16):
            p(f"v_add_f32 v{vAcc+j}, v{vAcc+j}, v{vAcc+16*nt+j}")
    class Multi:
        def __init__(self): self.l = []
        def __call__(self, x): self.l.append(x)
    seqs = []
    for e in range(8):
        m = Multi()
        ln_finish(m, vAcc + e, vAcc + 8 + e, 896, vAcc + 16 + e, vAcc + 24 + e, vAcc + 32 + e, vAcc + 40 + e)
        seqs.append(m.l)
    for step in zip(*seqs):
        for l in step: p(l)
    for hf in range(2):
        p(f"v_add_u32 v{vt+2}, {4*hf}, v{vt+1}")
        p(f"v_subrev_u32 v{vt+2}, s34, v{vt+2}")
        p(f"v_and_b32 v{vt+2}, 7, v{vt+2}")
        p(f"v_lshlrev_b32 v{vt+2}, 4, v{vt+2}")
        p(f"v_add_u32 v{vt+2}, v{vt+2}, v{vt}")
        p(f"v_lshl_add_u32 v{vt+3}, v{vt+2}, 4, s46")
        p(f"ds_write_b128 v{vt+3}, {vr(vAcc+24+4*hf, 4)}")
        m0 = vAcc + 16 + 4 * hf
        p(f"v_cvt_pk_bf16_f32 v{vAcc+48+2*hf}, v{m0}, v{m0+1}")
        p(f"v_cvt_pk_bf16_f32 v{vAcc+49+2*hf}, v{m0+2}, v{m0+3}")
        p(f"v_lshl_add_u32 v{vt+3}, v{vt+2}, 3, s46")
        p(f"ds_write_b64 v{vt+3}, {vr(vAcc+48+2*hf, 2)} offset:2048")
    p(f"v_lshl_add_u32 v{vMa}, v{vt+1}, 4, s46")
    p("s_waitcnt lgkmcnt(0)")
    for j in range(128): p(f"v_mov_b32 v{vAcc+j}, 0")
    stamp(p, 1, stamps)
    def wreads(k):
        c, hh = k >> 1, k & 1
        F = vWf + 16 * (k & 1)
        out = []
        out.append(f"ds_read_b128 {vr(vR, 4)}, v{vRa} offset:{128*k}")
        out.append(f"ds_read_b128 {vr(F, 4)}, v{vWr0 + hh} offset:{(c & 1) * 8192}")
        out.append(f"ds_read_b128 {vr(vR+4, 4)}, v{vRa} offset:{128*k + 16}")
        for t in range(1, 4):
            out.append(f"ds_read_b128 {vr(F + 4*t, 4)}, v{vWr0 + hh} offset:{(c & 1) * 8192 + 2048 * t}")
        out.append(f"ds_read_b128 {vr(vMu + 4*(k & 1), 4)}, v{vMa} offset:{2048 + 64*k}")
        return out
    def scale(k):
        F = vWf + 16 * (k & 1)
        out = []
        for t in range(4):
            for j in range(4):
                x = F + 4*t + j; a = vt + 2 * (j & 1); b = a + 1
                out += [f"v_lshlrev_b32 v{a}, 16, v{x}", f"v_and_b32 v{b}, 0xffff0000, v{x}",
                        f"v_mul_f32 v{a}, v{a}, v{vR+2*j}", f"v_mul_f32 v{b}, v{b}, v{vR+2*j+1}",
                        f"v_cvt_pk_bf16_f32 v{x}, v{a}, v{b}"]
        return out
    vm.wait(("W", 0))
    for l in wreads(0): p(l)
    p("s_waitcnt lgkmcnt(0)")
    for l in scale(0): p(l)
    stamp(p, 2, stamps)
    for k in range(16):
        F = vWf + 16 * (k & 1)
        nxt = k + 1 < 16
        if nxt:
            if (k + 1) & 1 == 0: vm.wait(("W", (k + 1) >> 1))
            for l in wreads(k + 1): p(l)
        S = scale(k + 1) if nxt else []
        Wd = []
        n = 0
        for f in range(-1, 7):
            if f >= 0: vm.wait(("Z", 7*k + f))
            for t in range(4):
                if f < 0:
                    acc = vr(vCor + 4*t, 4); A = vr(vMu + 4*(k & 1), 4)
                else:
                    acc = vr(vAcc + 16*f + 4*t, 4); A = vr(vZr + 4*((7*k + f) % NZ), 4)
                p(f"v_mfma_f32_16x16x32_bf16 {acc}, {A}, {vr(F + 4*t, 4)}, {acc}")
                n += 1
                if n == 4 and nxt:
                    p("s_waitcnt lgkmcnt(0)")
                    if (k + 1) & 1 == 1 and ((k + 1) >> 1) + 2 < 8:
                        Wd = [(l, ("W", ((k + 1) >> 1) + 2)) for l in issue_w(((k + 1) >> 1) + 2)]
                if n >= 4:
                    for l in S[:3]: p(l)
                    S = S[3:]
                    if Wd and n % 3 == 0:
                        l, tag = Wd.pop(0); p(l); vm.issue(tag)
            if f >= 0 and 7*k + f + NZ < 112:
                p(zload(7*k + f + NZ)); vm.issue(("Z", 7*k + f + NZ))
        assert not S and not Wd
    stamp(p, 3, stamps)
    vZ1 = vZr
    vB = vZr + 16
    p("s_lshl_b32 s47, s28, 2")
    p("s_add_u32 s47, s47, s30")
    p("s_lshl_b32 s48, s47, 3")
    p("s_add_u32 s48, s48, s29")
    p("s_mul_i32 s48, s48, 3584")
    p(f"s_add_u32 s48, s48, {Z1F:#x}")
    p(f"v_lshrrev_b32 v{vt}, 1, v{vLane16}")
    for q in range(3):
        p(f"buffer_load_dwordx4 {vr(vZ1+4*q, 4)}, v{vLane16}, s[24:27], s48 offen offset:{1024*q}")
    p(f"buffer_load_dwordx2 {vr(vZ1+12, 2)}, v{vt}, s[24:27], s48 offen offset:3072")
    p(f"v_and_b32 v{vt+1}, 15, v0")
    p(f"v_lshlrev_b32 v{vt+1}, 1, v{vt+1}")
    p("s_lshl_b32 s49, s47, 5")
    p(f"buffer_load_ushort v{vB}, v{vt+1}, s[16:19], s49 offen")
    def tile(f, t): return (vCor + 4*t) if f == 7 else (vAcc + 16*f + 4*t)
    p(f"v_add_u32 v{vt+1}, s40, v{vLane16}")
    for t in (2, 3):
        for f in range(8):
            p(f"ds_write_b128 v{vt+1}, {vr(tile(f, t), 4)} offset:{((t-2)*8 + f) * 1024}")
    p("s_xor_b32 s50, s40, 32768")
    p(f"v_add_u32 v{vt+2}, s50, v{vLane16}")
    p("s_waitcnt lgkmcnt(0)")
    p("s_barrier")
    for t in (1, 0):
        for f in range(8):
            p(f"ds_read_b128 {vr(tile(f, t+2), 4)}, v{vt+2} offset:{(t*8 + f) * 1024}")
    p("s_waitcnt lgkmcnt(8)")
    for f in range(8):
        for r in range(4): p(f"v_add_f32 v{tile(f,1)+r}, v{tile(f,1)+r}, v{tile(f,3)+r}")
    for f in range(8):
        p(f"ds_write_b128 v{vt+2}, {vr(tile(f, 1), 4)} offset:{(8 + f) * 1024}")
    p("s_waitcnt lgkmcnt(8)")
    for f in range(8):
        for r in range(4): p(f"v_add_f32 v{tile(f,0)+r}, v{tile(f,0)+r}, v{tile(f,2)+r}")
    p("s_xor_b32 s50, s40, 49152")
    p(f"v_add_u32 v{vt+2}, s50, v{vLane16}")
    p("s_waitcnt lgkmcnt(0)")
    p("s_barrier")
    for f in (7, 0, 1, 2, 3, 4, 5, 6):
        p(f"ds_read_b128 {vr(tile(f, 1), 4)}, v{vt+2} offset:{(8 + f) * 1024}")
    p("s_mul_i32 s48, s47, 28672")
    p(f"s_add_u32 s48, s48, {HF:#x}")
    p("s_lshr_b32 s49, s29, 1")
    p("s_add_u32 s49, s49, 24")
    p("s_lshl_b32 s49, s49, 10")
    p("s_and_b32 s50, s29, 1")
    p("s_lshl_b32 s50, s50, 3")
    p("s_add_u32 s49, s49, s50")
    p("s_add_u32 s49, s49, s48")
    p("s_mul_i32 s50, s29, 3072")
    p("s_add_u32 s48, s48, s50")
    p("s_waitcnt vmcnt(0) lgkmcnt(7)")
    p(f"v_lshlrev_b32 v{vB}, 16, v{vB}")
    p(f"v_add_f32 v{vCor}, v{vCor}, v{vCor+4}")
    vH = vWf
    for f in range(7):
        p(f"s_waitcnt lgkmcnt({6-f})")
        A = [tile(f, 0) + r for r in range(4)]; B = [tile(f, 1) + r for r in range(4)]
        for r in range(4): p(f"v_add_f32 v{A[r]}, v{A[r]}, v{B[r]}")
        for r in range(4): p(f"v_sub_f32 v{A[r]}, v{A[r]}, v{vCor}")
        for h in range(2): p(f"v_cvt_pk_bf16_f32 v{B[h]}, v{A[2*h]}, v{A[2*h+1]}")
        for h in range(2):
            p(f"v_lshlrev_b32 v{A[2*h]}, 16, v{B[h]}")
            p(f"v_and_b32 v{A[2*h+1]}, 0xffff0000, v{B[h]}")
        for r in range(4): p(f"v_add_f32 v{A[r]}, v{A[r]}, v{vB}")
        for h in range(2): p(f"v_cvt_pk_bf16_f32 v{B[h]}, v{A[2*h]}, v{A[2*h+1]}")
        for h in range(2):
            p(f"v_lshlrev_b32 v{A[2*h]}, 16, v{B[h]}")
            p(f"v_and_b32 v{A[2*h+1]}, 0xffff0000, v{B[h]}")
        for h in range(2):
            p(f"v_lshlrev_b32 v{B[2*h]}, 16, v{vZ1+2*f+h}")
            p(f"v_and_b32 v{B[2*h+1]}, 0xffff0000, v{vZ1+2*f+h}")
        for r in range(4): p(f"v_mul_f32 v{A[r]}, v{A[r]}, v{B[r]}")
        for h in range(2): p(f"v_cvt_pk_bf16_f32 v{vH+2*f+h}, v{A[2*h]}, v{A[2*h+1]}")
        if f & 1:
            p(f"buffer_store_dwordx4 {vr(vH+2*(f-1), 4)}, v{vLane16}, s[24:27], s48 offen offset:{1024*(f>>1)}")
        elif f == 6:
            p(f"buffer_store_dwordx2 {vr(vH+12, 2)}, v{vLane16}, s[24:27], s49 offen")
    stamp(p, 4, stamps); stamp(p, 5, stamps)
    stamp_out(p, stamps, 6, 1, 10, 4)
    p("s_endpgm")

    p.label("L_k2_side")
    vm.q = []
    RS = 1056
    L_XY = 0
    L_KC = 0
    L_RED = 33280
    L_T2 = 66048 + 16
    L_U = 72736
    vLane, vI, vG = 1, 2, 3
    vt = 4
    vP = 20
    vCm = 24
    vU = 28
    vWo = 32
    vE = 40
    vY = 52
    vX = 68
    vWa = 76
    vA = 80
    vAc = 208
    p("s_load_dwordx8 s[4:11], s[0:1], 8")
    p("s_load_dwordx4 s[12:15], s[0:1], 40")
    p("s_load_dwordx2 s[16:17], s[0:1], 88")
    p("s_load_dwordx2 s[18:19], s[0:1], 112")
    p(f"v_lshrrev_b32 v{vt}, 6, v0")
    p(f"v_and_b32 v{vLane}, 63, v0")
    p(f"v_readfirstlane_b32 s30, v{vt}")
    p(f"v_and_b32 v{vI}, 15, v0")
    p(f"v_lshrrev_b32 v{vG}, 4, v{vLane}")
    p("s_sub_u32 s28, s2, 256")
    p("s_lshl_b32 s29, s28, 9")
    p(f"v_lshl_add_u32 v{vt}, v0, 1, s29")
    p(f"v_lshl_add_u32 v{vt+1}, v{vLane}, 3, s29")
    p("s_lshl_b32 s31, s28, 1")
    p(f"v_mov_b32 v{vt+2}, s31")
    p("s_lshl_b32 s31, s28, 12")
    p(f"s_add_u32 s31, s31, {XNT:#x}")
    p(f"v_lshlrev_b32 v{vt+3}, 4, v0")
    p("s_waitcnt lgkmcnt(0)")
    p(f"global_load_ushort v{vt+8}, v{vt+2}, s[12:13]"); vm.issue("P")
    for j in range(4):
        p(f"global_load_ushort v{vP+j}, v{vt}, s[{4+2*j}:{5+2*j}]"); vm.issue("P")
    p(f"global_load_dwordx2 {vr(vCm, 2)}, v{vt+1}, s[8:9]"); vm.issue("P")
    p(f"global_load_dwordx2 {vr(vCm+2, 2)}, v{vt+1}, s[10:11]"); vm.issue("P")
    p(f"global_load_ushort v{vt+9}, v{vt+2}, s[14:15]"); vm.issue("D")
    srd(p, 24, 18, WS_SIZE)
    p(f"buffer_load_dwordx4 {vr(vU, 4)}, v{vt+3}, s[24:27], s31 offen"); vm.issue("U")
    srd(p, 20, 16, 802816)
    p("s_lshl_b32 s42, s28, 2")
    p("s_add_u32 s42, s42, s30")
    p("s_cmp_ge_u32 s42, 784")
    p("s_cbranch_scc1 L_k2_nowotl")
    p("s_mul_i32 s44, s42, 2341")
    p("s_lshr_b32 s44, s44, 16")
    p("s_mul_i32 s45, s44, 28")
    p("s_sub_u32 s45, s42, s45")
    p("s_mul_i32 s46, s45, 43")
    p("s_lshr_b32 s46, s46, 7")
    p("s_mul_i32 s47, s46, 3")
    p("s_sub_u32 s47, s45, s47")
    p("s_mul_i32 s46, s46, 112")
    p("s_lshl_b32 s47, s47, 5")
    p("s_add_u32 s46, s46, s47")
    p("s_add_u32 s47, s46, 16")
    p("s_sub_u32 s48, s45, 24")
    p("s_mul_i32 s48, s48, 224")
    p("s_add_u32 s48, s48, 96")
    p("s_add_u32 s49, s48, 112")
    p("s_cmp_ge_u32 s45, 24")
    p("s_cselect_b32 s46, s48, s46")
    p("s_cselect_b32 s47, s49, s47")
    p("s_mul_i32 s46, s46, 896")
    p("s_mul_i32 s47, s47, 896")
    p("s_lshr_b32 s48, s44, 1")
    p("s_lshl_b32 s48, s48, 5")
    p("s_and_b32 s49, s44, 1")
    p("s_lshl_b32 s49, s49, 2")
    p("s_add_u32 s48, s48, s49")
    p(f"v_lshrrev_b32 v{vt+4}, 2, v{vI}")
    p(f"v_lshlrev_b32 v{vt+4}, 3, v{vt+4}")
    p(f"v_and_b32 v{vt+5}, 3, v{vI}")
    p(f"v_add3_u32 v{vt+4}, v{vt+4}, v{vt+5}, s48")
    p(f"v_lshlrev_b32 v{vt+4}, 1, v{vt+4}")
    p(f"v_mul_u32_u24 v{vt+5}, 3584, v{vG}")
    p(f"v_add_u32 v{vt+4}, v{vt+4}, v{vt+5}")
    p("s_waitcnt vmcnt(0)")
    for j in range(8):
        so = "s46" if j < 4 else "s47"
        dst = vWo + j // 2 + 4 * (j & 1)
        p(f"buffer_load_ushort v{dst}, v{vt+4}, s[20:23], {so} offen offset:{896*(j&3)}")
    p("s_branch L_k2_wotj")
    p.label("L_k2_nowotl")
    p("s_waitcnt vmcnt(0)")
    p.label("L_k2_wotj")
    vm.q = []
    stamp(p, 1, stamps)
    p(f"v_mov_b32 v{vt+4}, 0")
    p(f"v_mov_b32 v{vt+5}, 0")
    p(f"v_add_u32 v{vt+3}, {L_U + 512}, v{vt+3}")
    p(f"ds_write_b128 v{vt+3}, {vr(vU, 4)}")
    p(f"v_lshlrev_b32 v{vt+6}, 3, v{vLane}")
    p(f"v_add_u32 v{vt+6}, {L_U}, v{vt+6}")
    p(f"ds_write_b64 v{vt+6}, {vr(vt+4, 2)}")
    p(f"v_and_b32 v{vt+6}, 1, v0")
    p(f"v_lshlrev_b32 v{vt+6}, 3, v{vt+6}")
    p(f"v_add_u32 v{vt+6}, {L_T2 - 16}, v{vt+6}")
    p(f"ds_write_b64 v{vt+6}, {vr(vt+4, 2)}")
    for j in range(4): p(f"v_and_b32 v{vCm+j}, 0x7f807f80, v{vCm+j}")
    p(f"v_pk_max_u16 v{vCm}, v{vCm}, v{vCm+1}")
    p(f"v_pk_max_u16 v{vCm+2}, v{vCm+2}, v{vCm+3}")
    p(f"v_pk_max_u16 v{vCm}, v{vCm}, v{vCm+2}")
    p(f"v_lshrrev_b32 v{vCm+1}, 16, v{vCm}")
    p(f"v_and_b32 v{vCm}, 0xffff, v{vCm}")
    p(f"v_max_u32 v{vCm}, v{vCm}, v{vCm+1}")
    for sh in (8, 4, 2, 1):
        p(f"v_max_u32_dpp v{vCm}, v{vCm}, v{vCm} row_ror:{sh} row_mask:0xf bank_mask:0xf")
    for j in range(4): p(f"v_readlane_b32 s{32+j}, v{vCm}, {16*j}")
    p("s_max_u32 s32, s32, s33")
    p("s_max_u32 s34, s34, s35")
    p("s_max_u32 s32, s32, s34")
    p("s_lshr_b32 s32, s32, 7")
    p("s_max_u32 s32, s32, 1")
    p("s_min_u32 s32, s32, 253")
    p("s_sub_u32 s33, 254, s32")
    p("s_lshl_b32 s33, s33, 23")
    p("s_lshl_b32 s32, s32, 23")
    L2E_HI = 1.4426950216293335; L2E_LO = 1.4426950408889634 - L2E_HI
    def exp_precise(dst, src, t):
        p(f"v_lshlrev_b32 v{src}, 16, v{src}")
        p(f"v_mul_f32 v{t}, {f2u(L2E_HI)}, v{src}")
        p(f"v_rndne_f32 v{t}, v{t}")
        p(f"v_fma_f32 v{dst}, v{src}, s36, -v{t}")
        p(f"v_fmac_f32 v{dst}, {f2u(L2E_LO)}, v{src}")
        p(f"v_exp_f32 v{dst}, v{dst}")
        p(f"v_cvt_i32_f32 v{t}, v{t}")
        p(f"v_ldexp_f32 v{dst}, v{dst}, v{t}")
        bf16_round(p, dst, dst)
    p(f"s_mov_b32 s36, {f2u(L2E_HI)}")
    exp_precise(vt + 10, vt + 8, vt + 4)
    exp_precise(vt + 11, vP, vt + 5)
    p(f"v_lshlrev_b32 v{vP+1}, 16, v{vP+1}")
    p(f"v_lshlrev_b32 v{vP+2}, 16, v{vP+2}")
    p(f"v_lshlrev_b32 v{vP+3}, 16, v{vP+3}")
    p(f"v_mul_f32 v{vt+11}, v{vt+11}, v{vt+10}")
    p(f"v_mul_f32 v{vt+11}, {f2u(-1.4426950408889634)}, v{vt+11}")
    p(f"v_mul_f32 v{vt+12}, v{vP+1}, v{vt+10}")
    p(f"v_mul_f32 v{vt+12}, {f2u(0.15915494309189535)}, v{vt+12}")
    p(f"v_mul_f32 v{vX}, s33, v{vP+2}")
    p(f"v_mul_f32 v{vX+1}, s33, v{vP+3}")
    p(f"v_mul_f32 v{vt+10}, s32, v{vt+10}")
    p(f"v_add_f32 v{vt+10}, v{vt+10}, v{vt+10}")
    p(f"v_lshlrev_b32 v{vt+9}, 16, v{vt+9}")
    PW = [1, 2, 4, 8, 64, 256]
    for n, pw in enumerate(PW):
        p(f"v_mul_f32 v{vE+2*n}, {f2u(float(pw))}, v{vt+11}")
        p(f"v_mul_f32 v{vE+2*n+1}, {f2u(float(pw))}, v{vt+12}")
    for n in range(6): p(f"v_fract_f32 v{vE+2*n+1}, v{vE+2*n+1}")
    for n in range(6): p(f"v_exp_f32 v{vY+n}, v{vE+2*n}")
    for n in range(6): p(f"v_cos_f32 v{vE+2*n}, v{vE+2*n+1}")
    for n in range(6): p(f"v_sin_f32 v{vE+2*n+1}, v{vE+2*n+1}")
    for n in range(6):
        p(f"v_mul_f32 v{vE+2*n}, v{vE+2*n}, v{vY+n}")
        p(f"v_mul_f32 v{vE+2*n+1}, v{vE+2*n+1}, v{vY+n}")
    E = {pw: vE + 2*n for n, pw in enumerate(PW)}
    p(f"v_lshlrev_b32 v{vWa}, 2, v0")
    tog = [0]
    def cmul(d, a, b):
        t = vt; assert d != a
        return [f"v_mul_f32 v{t}, v{a+1}, v{b+1}", f"v_mul_f32 v{t+1}, v{a+1}, v{b}",
                f"v_fma_f32 v{t+1}, v{a}, v{b+1}, v{t+1}", f"v_fma_f32 v{d}, v{a}, v{b}, -v{t}", f"v_mov_b32 v{d+1}, v{t+1}"] if d == a else \
               [f"v_mul_f32 v{d}, v{a+1}, v{b+1}", f"v_mul_f32 v{d+1}, v{a+1}, v{b}",
                f"v_fma_f32 v{d}, v{a}, v{b}, -v{d}", f"v_fmac_f32 v{d+1}, v{a}, v{b+1}"]
    def put(row, c, neg):
        t = vt + (4 if neg else 6) + (tog[0] & 1); tog[0] += 1
        return [f"v_cvt_pk_f16_f32 v{t}, v{c}, {'-' if neg else ''}v{c+1}", f"ds_write_b32 v{vWa}, v{t} offset:{L_XY + row*RS}"]
    s1 = [f"v_mov_b32 v{vY}, 1.0", f"v_mov_b32 v{vY+1}, 0", f"v_mov_b32 v{vY+2}, v{E[8]}", f"v_mov_b32 v{vY+3}, v{E[8]+1}"]
    s1 += put(21, vY, True) + put(22, vY + 2, True)
    for j in range(2, 8):
        s1 += cmul(vY + 2*j, vY + 2*(j-1), E[8]) + put(21 + j, vY + 2*j, True)
    YB = vA
    cur, oth = vY, YB
    for blk in range(1, 4):
        for j in range(8):
            s1 += cmul(oth + 2*j, cur + 2*j, E[64]) + put(21 + 8*blk + j, oth + 2*j, True)
        cur, oth = oth, cur
    X0, XA, XB, XC = vX, vX + 2, vX + 4, vX + 6
    s2 = put(0, X0, False)
    a, b = X0, XA
    s2 += cmul(XA, X0, E[1]) + put(1, XA, False)
    a, b = XA, XB
    for e in range(2, 8):
        s2 += cmul(b, a, E[1]) + put(e, b, False); a, b = b, a
    s2 += cmul(XC, X0, E[256]) + put(8, XC, False)
    s2 += cmul(XA, XC, E[2]) + put(9, XA, False)
    s2 += cmul(XB, XA, E[2]) + put(10, XB, False)
    s2 += cmul(XA, XB, E[2]) + put(11, XA, False)
    s2 += cmul(X0, XC, E[256]) + put(12, X0, False)
    s2 += cmul(XA, X0, E[4]) + put(13, XA, False)
    s2 += cmul(XC, X0, E[256]) + put(14, XC, False)
    s2 += cmul(XA, XC, E[4]) + put(15, XA, False)
    a, b = XC, X0
    for m in range(5):
        s2 += cmul(b, a, E[256]) + put(16 + m, b, False); a, b = b, a
    while s1 or s2:
        for l in s1[:3]: p(l)
        s1 = s1[3:]
        for l in s2[:2]: p(l)
        s2 = s2[2:]
    p("s_cmp_ge_u32 s42, 784")
    p("s_cbranch_scc1 L_k2_nowots")
    p("s_waitcnt vmcnt(0)")
    p("s_lshl_b32 s37, s42, 10")
    p(f"s_add_u32 s37, s37, {WOT:#x}")
    p(f"v_lshlrev_b32 v{vt}, 4, v{vLane}")
    for j in range(4):
        p(f"v_lshl_or_b32 v{vWo+j}, v{vWo+4+j}, 16, v{vWo+j}")
    p(f"buffer_store_dwordx4 {vr(vWo, 4)}, v{vt}, s[24:27], s37 offen")
    p.label("L_k2_nowots")
    p("s_lshr_b32 s37, s30, 1")
    p("s_and_b32 s38, s30, 1")
    p(f"s_mul_i32 s39, s37, {16*RS}")
    p(f"s_mul_i32 s40, s38, {16*RS}")
    p(f"s_add_u32 s40, s40, {21*RS}")
    p(f"v_mul_u32_u24 v{vt}, {RS}, v{vI}")
    p(f"v_lshl_add_u32 v{vt}, v{vG}, 4, v{vt}")
    p(f"v_add_u32 v{vt+1}, s40, v{vt}")
    p(f"v_add_u32 v{vt}, s39, v{vt}")
    for j in range(4): p(f"v_mov_b32 v{vAc+j}, 0")
    p("s_waitcnt lgkmcnt(0)")
    p("s_barrier")
    stamp(p, 2, stamps)
    for sx in range(16):
        p(f"ds_read_b128 {vr(vA + 8*sx, 4)}, v{vt} offset:{64*sx}")
        p(f"ds_read_b128 {vr(vA + 8*sx + 4, 4)}, v{vt+1} offset:{64*sx}")
    p(f"v_cmp_eq_u32 vcc, 1, v{vG}")
    p(f"v_cmp_eq_u32 s[44:45], 2, v{vG}")
    p(f"v_cmp_eq_u32 s[46:47], 3, v{vG}")
    p("s_cmp_eq_u32 s37, 0")
    for n, (a0, a1) in enumerate([(0, 1024), (4, 2048), (256, 2304), (512, 2304), (1, 256), (2, 256), (4, 256), (2, 512), (4, 512), (256, 512)]):
        p(f"s_mov_b32 s{50+n}, {a1}")
        p(f"s_cselect_b32 s{50+n}, {a0}, s{50+n}")
    p(f"v_mov_b32 v{vt+2}, s50"); p(f"v_mov_b32 v{vt+5}, s51")
    p(f"v_cndmask_b32 v{vt+2}, v{vt+2}, v{vt+5}, vcc")
    p(f"v_mov_b32 v{vt+5}, s52")
    p(f"v_cndmask_b32 v{vt+2}, v{vt+2}, v{vt+5}, s[44:45]")
    p(f"v_mov_b32 v{vt+5}, s53")
    p(f"v_cndmask_b32 v{vt+2}, v{vt+2}, v{vt+5}, s[46:47]")
    p(f"v_mov_b32 v{vt+3}, s54"); p(f"v_mov_b32 v{vt+5}, s55")
    p(f"v_cndmask_b32 v{vt+3}, v{vt+3}, v{vt+5}, s[44:45]")
    p(f"v_mov_b32 v{vt+5}, s56")
    p(f"v_cndmask_b32 v{vt+3}, v{vt+3}, v{vt+5}, s[46:47]")
    p(f"v_mov_b32 v{vt+4}, s57"); p(f"v_mov_b32 v{vt+5}, s58")
    p(f"v_cndmask_b32 v{vt+4}, v{vt+4}, v{vt+5}, s[44:45]")
    p(f"v_mov_b32 v{vt+5}, s59")
    p(f"v_cndmask_b32 v{vt+4}, v{vt+4}, v{vt+5}, s[46:47]")
    p("s_lshl_b32 s39, s38, 7")
    p(f"v_lshl_add_u32 v{vt+2}, v{vI}, 3, v{vt+2}")
    p(f"v_add_u32 v{vt+2}, s39, v{vt+2}")
    p(f"v_lshlrev_b32 v{vt+2}, 1, v{vt+2}")
    p(f"v_add_u32 v{vt+2}, {L_T2}, v{vt+2}")
    p(f"v_lshl_add_u32 v{vt+3}, v{vt+3}, 1, v{vt+2}")
    p(f"v_lshl_add_u32 v{vt+5}, v{vt+4}, 1, v{vt+3}")
    p(f"v_lshl_add_u32 v{vt+4}, v{vt+4}, 1, v{vt+2}")
    for sx in range(16):
        p(f"s_waitcnt lgkmcnt({min(15, 30 - 2*sx)})")
        p(f"v_mfma_f32_16x16x32_f16 {vr(vAc, 4)}, {vr(vA + 8*sx, 4)}, {vr(vA + 8*sx + 4, 4)}, {vr(vAc, 4)}")
    vGa = vA
    p(f"v_lshlrev_b32 v{vt+6}, 4, v0")
    p(f"v_sub_u32 v{vt+6}, 4094, v{vt+6}")
    p(f"v_cvt_f32_i32 v{vt+6}, v{vt+6}")
    for e in range(0, 16, 2):
        p(f"v_add_f32 v{vGa+e}, {f2u(-2.0*e)}, v{vt+6}")
        p(f"v_add_f32 v{vGa+e+1}, {f2u(-2.0*e-2)}, v{vt+6}")
    p(f"v_cvt_pk_f16_f32 v{vt+7}, v{vAc}, v{vAc+1}")
    p(f"v_cvt_pk_f16_f32 v{vt+8}, v{vAc+2}, v{vAc+3}")
    p(f"ds_write_b16 v{vt+2}, v{vt+7}")
    p(f"ds_write_b16_d16_hi v{vt+3}, v{vt+7}")
    p(f"ds_write_b16 v{vt+4}, v{vt+8}")
    p(f"ds_write_b16_d16_hi v{vt+5}, v{vt+8}")
    for e in range(0, 16, 2):
        p(f"v_cvt_pk_bf16_f32 v{vGa+e+1}, v{vGa+e}, v{vGa+e+1}")
    for e in range(0, 16, 2):
        p(f"v_lshlrev_b32 v{vGa+e}, 16, v{vGa+e+1}")
        p(f"v_and_b32 v{vGa+e+1}, 0xffff0000, v{vGa+e+1}")
    for e in range(16): p(f"v_cvt_i32_f32 v{vGa+e}, v{vGa+e}")
    for e in range(16): p(f"v_add_u32 v{vGa+e}, {L_T2}, v{vGa+e}")
    p("s_waitcnt lgkmcnt(0)")
    p("s_barrier")
    stamp(p, 3, stamps)
    vKv = vA + 16
    for e in range(15): p(f"ds_read_u16 v{vKv+e}, v{vGa+e}")
    vEv = vA + 32
    vOd = vA + 40
    p(f"v_lshlrev_b32 v{vt}, 4, v0")
    p("s_waitcnt lgkmcnt(0)")
    for q in range(7): p(f"v_lshl_or_b32 v{vEv+q}, v{vKv+2*q+1}, 16, v{vKv+2*q}")
    for q in range(7): p(f"v_lshl_or_b32 v{vOd+q}, v{vKv+2*q+2}, 16, v{vKv+2*q+1}")
    for c in range(8):
        base = (vEv if c % 2 == 0 else vOd) + c // 2
        if base % 2 == 0:
            p(f"ds_write_b128 v{vt}, {vr(base, 4)} offset:{L_KC + c*4160}")
        else:
            for j in range(4): p(f"v_mov_b32 v{vA+48+4*(c&3)+j}, v{base+j}")
            p(f"ds_write_b128 v{vt}, {vr(vA+48+4*(c&3), 4)} offset:{L_KC + c*4160}")
    p(f"v_and_b32 v{vt+1}, 7, v0")
    p(f"v_mul_u32_u24 v{vt+1}, 4160, v{vt+1}")
    for j in range(4): p(f"v_mov_b32 v{vt+4+j}, 0")
    p(f"ds_write_b128 v{vt+1}, {vr(vt+4, 4)} offset:{L_KC + 4096}")
    p(f"v_sub_u32 v{vt+1}, 7, v{vI}")
    p(f"v_and_b32 v{vt+1}, 7, v{vt+1}")
    p(f"v_mul_u32_u24 v{vt+1}, 4160, v{vt+1}")
    p(f"v_lshrrev_b32 v{vt+2}, 3, v{vI}")
    p(f"v_sub_u32 v{vt+2}, v{vG}, v{vt+2}")
    p(f"v_lshl_add_u32 v{vt+1}, v{vt+2}, 4, v{vt+1}")
    p("s_lshl_b32 s39, s30, 7")
    p(f"s_sub_u32 s40, {L_KC + 253*16 - 57*64}, s39")
    p(f"v_add_u32 v{vt+1}, s40, v{vt+1}")
    p(f"v_lshlrev_b32 v{vt+2}, 5, v{vI}")
    p(f"v_lshl_add_u32 v{vt+2}, v{vG}, 4, v{vt+2}")
    p(f"s_sub_u32 s40, {L_U + 512 - 32 - 64}, s39")
    p(f"v_add_u32 v{vt+2}, s40, v{vt+2}")
    for j in range(32): p(f"v_mov_b32 v{vAc+j}, 0")
    p("s_waitcnt lgkmcnt(0)")
    p("s_barrier")
    stamp(p, 4, stamps)
    lg = Cnt(p, "lgkmcnt", 15)
    def AF(rl, m): return vA + 64*rl + 4*m
    def GF(rl, n): return vA + 64*rl + 32 + 4*n
    order = []
    for rl in range(2):
        for n in range(8):
            order.append((f"ds_read_b128 {vr(AF(rl, n), 4)}, v{vt+1} offset:{(7-n)*512 + (1-rl)*64}", (rl, n)))
            order.append((f"ds_read_b128 {vr(GF(rl, n), 4)}, v{vt+2} offset:{n*512 + (1-rl)*64}", (rl, n)))
    def issue(cnt):
        for _ in range(cnt):
            if order:
                l, tag = order.pop(0); p(l); lg.issue(tag)
    issue(12)
    for rl in range(2):
        for n in range(8):
            lg.wait((rl, n))
            issue(2)
            prods = [(n, v) for v in range(n + 1)] + [(m, n) for m in range(n)]
            for m, v in prods:
                if m + v <= 7:
                    acc = vr(vAc + 4*(m + v), 4)
                    p(f"v_mfma_f32_16x16x32_f16 {acc}, {vr(AF(rl, m), 4)}, {vr(GF(rl, v), 4)}, {acc}")
    p("s_lshl_b32 s39, s30, 13")
    p(f"s_add_u32 s39, s39, {L_RED}")
    p(f"v_lshl_add_u32 v{vt}, v{vLane}, 4, s39")
    for t in range(8):
        p(f"ds_write_b128 v{vt}, {vr(vAc + 4*t, 4)} offset:{1024*t}")
    p("s_lshl_b32 s39, s30, 11")
    p(f"s_add_u32 s39, s39, {L_RED}")
    p(f"v_lshl_add_u32 v{vt}, v{vLane}, 4, s39")
    p(f"v_lshlrev_b32 v{vt+1}, 5, v{vI}")
    p(f"v_lshl_add_u32 v{vt+1}, v{vG}, 3, v{vt+1}")
    p("s_lshl_b32 s40, s30, 10")
    p(f"s_add_u32 s41, s40, {L_U + 512}")
    p(f"v_add_u32 v{vt+2}, s41, v{vt+1}")
    p("s_waitcnt lgkmcnt(0)")
    p("s_barrier")
    stamp(p, 5, stamps)
    for t in range(2):
        for ww in range(4):
            p(f"ds_read_b128 {vr(vA + 16*t + 4*ww, 4)}, v{vt} offset:{8192*ww + 1024*t}")
        p(f"ds_read_b64 {vr(vA + 32 + 2*t, 2)}, v{vt+2} offset:{512*t}")
    p("s_lshl_b32 s41, s28, 12")
    p("s_add_u32 s41, s41, s40")
    p(f"s_add_u32 s41, s41, {ST:#x}")
    p("s_waitcnt lgkmcnt(0)")
    for t in range(2):
        Y = [vA + 16*t + r for r in range(4)]
        for r in range(4): p(f"v_add_f32 v{Y[r]}, v{Y[r]}, v{Y[r]+4}")
        for r in range(4): p(f"v_add_f32 v{Y[r]+8}, v{Y[r]+8}, v{Y[r]+12}")
        for r in range(4): p(f"v_add_f32 v{Y[r]}, v{Y[r]}, v{Y[r]+8}")
        for r in range(4): p(f"v_mul_f32 v{Y[r]}, v{Y[r]}, v{vt+10}")
        U = [Y[r] + 4 for r in range(4)]
        for h in range(2):
            p(f"v_cvt_f32_f16 v{U[2*h]}, v{vA+32+2*t+h}")
            p(f"v_lshrrev_b32 v{U[2*h+1]}, 16, v{vA+32+2*t+h}")
            p(f"v_cvt_f32_f16 v{U[2*h+1]}, v{U[2*h+1]}")
        for r in range(4): p(f"v_mul_f32 v{U[r]}, v{U[r]}, v{vt+9}")
        for V in (Y, U):
            for h in range(2): p(f"v_cvt_pk_bf16_f32 v{V[2*h+1]}, v{V[2*h]}, v{V[2*h+1]}")
            for h in range(2):
                p(f"v_lshlrev_b32 v{V[2*h]}, 16, v{V[2*h+1]}")
                p(f"v_and_b32 v{V[2*h+1]}, 0xffff0000, v{V[2*h+1]}")
        for r in range(4): p(f"v_add_f32 v{Y[r]}, v{Y[r]}, v{U[r]}")
        for h in range(2): p(f"v_cvt_pk_bf16_f32 v{Y[0]+8+h}, v{Y[2*h]}, v{Y[2*h+1]}")
        p(f"buffer_store_dwordx2 {vr(Y[0]+8, 2)}, v{vt+1}, s[24:27], s41 offen offset:{512*t}")
    stamp_out(p, stamps, 6, 1, 18, 4)
    p.label("L_k2_end")
    p("s_endpgm")
    p.fix_hazards()
    return p, 256, LDS_TOTAL

NSTAMP["k3_kernel"] = 6
def gen_k3(stamps=False):
    p = Prog()
    vm = Cnt(p, "vmcnt", 63)
    LDS_TOTAL = 49152
    vL16, vL16b, vI, vG, vXo, vSo = 1, 2, 3, 4, 5, 6
    vt = 8
    vX = 24
    vS = 32
    vAcc = 48
    NV = 112
    p("s_cmp_ge_u32 s2, 224")
    p("s_cbranch_scc1 L_k3_end")
    stamp(p, 0, stamps)
    p("s_load_dwordx2 s[4:5], s[0:1], 0")
    p("s_load_dwordx2 s[6:7], s[0:1], 96")
    p("s_load_dwordx2 s[10:11], s[0:1], 112")
    p(f"v_lshrrev_b32 v{vt}, 6, v0")
    p("v_and_b32 v0, 63, v0")
    p(f"v_readfirstlane_b32 s30, v{vt}")
    p(f"v_lshlrev_b32 v{vL16}, 4, v0")
    p(f"v_add_u32 v{vL16b}, 4096, v{vL16}")
    p(f"v_and_b32 v{vI}, 15, v0")
    p(f"v_lshrrev_b32 v{vG}, 4, v0")
    p("s_and_b32 s31, s2, 7")
    p("s_lshr_b32 s32, s2, 3")
    p("s_mul_i32 s33, s32, 37")
    p("s_lshr_b32 s33, s33, 8")
    p("s_mul_i32 s34, s33, 7")
    p("s_sub_u32 s29, s32, s34")
    p("s_lshl_b32 s28, s31, 2")
    p("s_add_u32 s28, s28, s33")
    p("s_mul_i32 s35, s30, 7168")
    p(f"s_mul_i32 s36, s29, {4*28672}")
    p("s_add_u32 s36, s36, s35")
    p(f"s_add_u32 s36, s36, {WOT:#x}")
    for d in range(1, 4): p(f"s_add_u32 s{36+d}, s{36+d-1}, 28672")
    p(f"s_mul_i32 s44, s28, {4*28672}")
    p("s_add_u32 s44, s44, s35")
    p(f"s_add_u32 s44, s44, {HF:#x}")
    for t in range(4):
        p(f"s_xor_b32 s{40+t}, s30, {t}")
        p(f"s_mul_i32 s{40+t}, s{40+t}, 28672")
        p(f"s_add_u32 s{40+t}, s{40+t}, s44")
    p("s_waitcnt lgkmcnt(0)")
    srd(p, 24, 10, WS_SIZE)
    srd(p, 12, 4, 1835008)
    srd(p, 16, 6, 1835008)
    def fr(sg_, n): return ar(32 * sg_ + 4 * n, 4)
    for sg_ in range(7):
        vo = vL16 if sg_ < 4 else vL16b
        for n in range(8):
            p(f"buffer_load_dwordx4 {fr(sg_, n)}, v{vo}, s[24:27], s{36+n} offen offset:{1024*(sg_ & 3)}"); vm.issue(sg_)
    p("s_lshl_b32 s45, s28, 6")
    p("s_lshl_b32 s46, s30, 4")
    p("s_add_u32 s45, s45, s46")
    p(f"v_add_u32 v{vt}, s45, v{vI}")
    p(f"v_mul_u32_u24 v{vXo}, 896, v{vt}")
    p(f"v_lshl_add_u32 v{vXo}, v{vG}, 4, v{vXo}")
    p("s_lshl_b32 s46, s29, 7")
    p(f"v_lshlrev_b32 v{vSo}, 15, v{vG}")
    p(f"v_lshl_add_u32 v{vSo}, v{vt}, 1, v{vSo}")
    p("s_lshl_b32 s47, s29, 18")
    p(f"s_add_u32 s47, s47, {ST:#x}")
    for j in range(64): p(f"v_mov_b32 v{vAcc+j}, 0")
    stamp(p, 1, stamps)
    for sg_ in range(7):
        vm.wait(sg_)
        if sg_ == 0: stamp(p, 2, stamps)
        for t in range(4):
            for d in range(4):
                acc = vr(vAcc + 16*t + 4*d, 4)
                p(f"v_mfma_f32_16x16x32_bf16 {acc}, {fr(sg_, d)}, {fr(sg_, 4+t)}, {acc}")
        if sg_ == 0:
            for P in range(2):
                p(f"buffer_load_dwordx4 {vr(vX+4*P, 4)}, v{vXo}, s[12:15], s46 offen offset:{64*P}"); vm.issue("X")
        if sg_ in (1, 2):
            P = sg_ - 1
            for j in range(8):
                p(f"buffer_load_short_d16_hi v{vS+8*P+j}, v{vSo}, s[24:27], s47 offen"); vm.issue("X")
                p(f"s_add_u32 s47, s47, {4096 if j < 7 else 4096*25}")
    stamp(p, 3, stamps)
    p("s_mul_i32 s48, s30, 12288")
    p(f"v_add_u32 v{vt}, s48, v{vL16}")
    for t in range(1, 4):
        for d in range(4):
            p(f"ds_write_b128 v{vt}, {vr(vAcc+16*t+4*d, 4)} offset:{((t-1)*4+d)*1024}")
    for t in range(1, 4):
        p(f"s_xor_b32 s48, s30, {t}")
        p("s_mul_i32 s48, s48, 12288")
        p(f"v_add_u32 v{vt+t}, s48, v{vL16}")
    p("s_waitcnt lgkmcnt(0)")
    p("s_barrier")
    for d in range(4):
        for t in range(1, 4):
            p(f"ds_read_b128 {vr(vAcc+16*t+4*d, 4)}, v{vt+t} offset:{((t-1)*4+d)*1024}")
    p("s_waitcnt vmcnt(0)")
    for P in range(2):
        p(f"s_waitcnt lgkmcnt({6 if P == 0 else 0})")
        O = [vAcc + 8*P + j for j in range(8)]
        T = [vt + j for j in range(8)]
        for j in range(0, 8, 2):
            p(f"v_pk_add_f32 {vr(O[j], 2)}, {vr(O[j], 2)}, {vr(O[j]+16, 2)}")
            p(f"v_pk_add_f32 {vr(O[j]+32, 2)}, {vr(O[j]+32, 2)}, {vr(O[j]+48, 2)}")
        for j in range(0, 8, 2):
            p(f"v_pk_add_f32 {vr(O[j], 2)}, {vr(O[j], 2)}, {vr(O[j]+32, 2)}")
        def rnd(V):
            for j in range(0, 8, 2): p(f"v_cvt_pk_bf16_f32 v{V[j+1]}, v{V[j]}, v{V[j+1]}")
            for j in range(0, 8, 2):
                p(f"v_lshlrev_b32 v{V[j]}, 16, v{V[j+1]}")
                p(f"v_and_b32 v{V[j+1]}, 0xffff0000, v{V[j+1]}")
        rnd(O)
        for j in range(8): p(f"v_mul_f32 v{T[j]}, {f2u(-1.4426950408889634)}, v{O[j]}")
        for j in range(8): p(f"v_exp_f32 v{T[j]}, v{T[j]}")
        for j in range(8): p(f"v_add_f32 v{T[j]}, 1.0, v{T[j]}")
        for j in range(8): p(f"v_rcp_f32 v{T[j]}, v{T[j]}")
        for j in range(0, 8, 2): p(f"v_pk_mul_f32 {vr(O[j], 2)}, {vr(O[j], 2)}, {vr(T[j], 2)}")
        rnd(O)
        for j in range(8): p(f"v_and_b32 v{vS+8*P+j}, 0xffff0000, v{vS+8*P+j}")
        for j in range(0, 8, 2): p(f"v_pk_mul_f32 {vr(O[j], 2)}, {vr(O[j], 2)}, {vr(vS+8*P+j, 2)}")
        rnd(O)
        for j in range(0, 8, 2):
            p(f"v_lshlrev_b32 v{T[j]}, 16, v{vX+4*P+j//2}")
            p(f"v_and_b32 v{T[j+1]}, 0xffff0000, v{vX+4*P+j//2}")
        for j in range(0, 8, 2): p(f"v_pk_add_f32 {vr(O[j], 2)}, {vr(O[j], 2)}, {vr(T[j], 2)}")
        for j in range(0, 8, 2): p(f"v_cvt_pk_bf16_f32 v{vX+4*P+j//2}, v{O[j]}, v{O[j+1]}")
        p(f"buffer_store_dwordx4 {vr(vX+4*P, 4)}, v{vXo}, s[16:19], s46 offen offset:{64*P}")
    stamp_out(p, stamps, 4, 2, 10, 4)
    p.label("L_k3_end")
    p("s_endpgm")
    p.fix_hazards()
    return p, NV, LDS_TOTAL

def build(stamps=False, which=("k1", "k2", "k3")):
    hdr = open("cdna_kernels/%s.s.ref" % NAME).read().split("; Override")[0]
    ks = []
    if "k1" in which:
        p, nv, lds = gen_k1(stamps); ks.append(("k1_kernel", p, nv, 0, lds, 256, 512))
    if "k2" in which:
        p, nv, lds = gen_k2(stamps); ks.append(("k2_kernel", p, nv, 0, lds, 704, 256))
    if "k3" in which:
        p, nv, lds = gen_k3(stamps); ks.append(("k3_kernel", p, nv, 224, lds, 224, 256))
    out = hdr
    for name, p, nv, na, lds, grid, blk in ks:
        out += f"; @launch kernel={name} grid=({grid},1,1) block=({blk},1,1) lds={lds}\n"
    out += '.amdgcn_target "amdgcn-amd-amdhsa--gfx950"\n.text\n'
    for name, p, nv, na, lds, grid, blk in ks:
        out += kernel_header(name) + p.text()
    out += '.section .rodata,"a"\n'
    for name, p, nv, na, lds, grid, blk in ks:
        out += kernel_desc(name, nv, agpr=na)
    return out

if __name__ == "__main__":
    stamps = "--stamps" in sys.argv
    outp = [a for a in sys.argv[1:] if not a.startswith("--")]
    outp = outp[0] if outp else "k.s"
    open(outp, "w").write(build(stamps))
    print("wrote", outp)
```
